```python
import torch

def _softmax(x, axis=-1):
    return torch.softmax(x, dim=axis)
def _gelu(x):
    return torch.nn.functional.gelu(x, approximate="tanh")
def _silu(x):
    return torch.nn.functional.silu(x)
def _sigmoid(x):
    return torch.sigmoid(x)
def _layernorm(x, axis=-1, eps=1e-5):
    m = x.mean(dim=axis, keepdim=True)
    v = x.var(dim=axis, keepdim=True, unbiased=False)
    return (x - m) / torch.sqrt(v + eps)
def _scatter_add(tgt, idx, src, axis=0):
    return tgt.clone().index_add_(axis, idx, src)
def _segment_sum(src, seg, n):
    out = torch.zeros((n,) + src.shape[1:], dtype=src.dtype)
    return out.index_add_(0, seg, src)
def _pad(x, pw):
    flat = tuple(v for pair in reversed(pw) for v in pair)
    return torch.nn.functional.pad(x, flat)

kernel_name = 'parallel_sum__sliding_block_cached__mixer_token_mlp__decode'

def setup_inputs():

    _w = (lambda a: (lambda t: t.to(torch.bfloat16) if t.is_floating_point() else t)(torch.as_tensor(a)))
    def _A_setup():
        B, Sq, D = 1, 1, 448
        Hq, Hkv, Sk, Dh = 16, 8, 32768, 256
        assert Hq % Hkv == 0, (Hq, Hkv)
        return {
            "x": _w((lambda *s: torch.randn(*s, dtype=torch.bfloat16) * 0.05)(B, Sq, D)),
            "k_cache": _w((lambda *s: torch.randn(*s, dtype=torch.bfloat16) * 1.6)(B, Hkv, Sk, Dh)),
            "v_cache": _w((lambda *s: torch.randn(*s, dtype=torch.bfloat16) * 0.8)(B, Hkv, Sk, Dh)),
            "wq": _w((lambda *s: torch.randn(*s, dtype=torch.bfloat16) * 1.6)(D, Hq * Dh) * (D ** -0.5)),
            "wo": _w((lambda *s: torch.randn(*s, dtype=torch.bfloat16) * 0.8)(Hq * Dh, D) * ((Hq * Dh) ** -0.5)),
        }
    _A_in = _A_setup()

    def _B_setup():
        B, S, D, F = 1, 1, 448, 1792
        return {
            "x": _w((lambda *s: torch.randn(*s, dtype=torch.bfloat16) * 0.05)(B, S, D)),
            "w1": _w((lambda *s: torch.randn(*s, dtype=torch.bfloat16) * 0.4)(S, F) * (S ** -0.5)),
            "b1": _w((lambda *s: torch.randn(*s, dtype=torch.bfloat16) * 0.4)(F) * 0.02),
            "w2": _w((lambda *s: torch.randn(*s, dtype=torch.bfloat16) * 0.4)(F, S) * (F ** -0.5)),
            "b2": _w((lambda *s: torch.randn(*s, dtype=torch.bfloat16) * 0.4)(S) * 0.02),
        }
    _B_in = _B_setup()

    return {
        "A_x": _A_in["x"],
        "A_k_cache": _A_in["k_cache"],
        "A_v_cache": _A_in["v_cache"],
        "A_wq": _A_in["wq"],
        "A_wo": _A_in["wo"],
        "B_x": _B_in["x"],
        "B_w1": _B_in["w1"],
        "B_b1": _B_in["b1"],
        "B_w2": _B_in["w2"],
        "B_b2": _B_in["b2"],
    }

def reference(A_x, A_k_cache, A_v_cache, A_wq, A_wo, B_x, B_w1, B_b1, B_w2, B_b2):
    def _A_ref(x, k_cache, v_cache, wq, wo):
        B, Sq, D = x.shape
        Hq, Dh = 16, 256
        Hkv, Sk = k_cache.shape[1], k_cache.shape[2]
        W = min(4096, max(256, Sk // 4))
        rep = Hq // Hkv
        q = (lambda x, *d: x.permute(*d))((x @ wq).reshape(B, Sq, Hq, Dh), 0, 2, 1, 3)
        k = (lambda x, n, axis: torch.repeat_interleave(x, n, dim=axis))(k_cache[:, :, Sk - W:, :], rep, axis=1)
        v = (lambda x, n, axis: torch.repeat_interleave(x, n, dim=axis))(v_cache[:, :, Sk - W:, :], rep, axis=1)
        scores = torch.einsum("bhqd,bhkd->bhqk", q, k) * (Dh ** -0.5)
        p = _softmax(scores, axis=-1)
        o = torch.einsum("bhqk,bhkd->bhqd", p, v)
        return (lambda x, *d: x.permute(*d))(o, 0, 2, 1, 3).reshape(B, Sq, Hq * Dh) @ wo

    def _B_ref(x, w1, b1, w2, b2):
        B, S, D = x.shape
        h = _layernorm(x, axis=-1)
        u = torch.einsum("bsd,sf->bdf", h, w1) + b1
        u = _gelu(u)
        y = torch.einsum("bdf,fs->bds", u, w2) + b2
        return (lambda x, *d: x.permute(*d))(y, 0, 2, 1)

    x = A_x
    xn = _layernorm(x, axis=-1)
    return x + _A_ref(xn, A_k_cache, A_v_cache, A_wq, A_wo) + _B_ref(xn, B_w1, B_b1, B_w2, B_b2)
```

```python
import sys
NAME = "parallel_sum__sliding_block_cached__mixer_token_mlp__decode"
out = []
def E(s=""):
    out.append(s)
def I(s):
    out.append("    " + s)

WS_Q = 0
WS_Y = 16384
WS_OP = 65536
WS_ML = WS_OP + 256*2*256*4
WS_P3 = 1048576
WS_SIZE = 536870912

hdr = open("cdna_kernels/%s.s.ref" % NAME).read().split("\n")
for l in hdr:
    if l.startswith("; @launch"):
        break
    E(l)
E("; @launch kernel=k1_kernel grid=(240,1,1) block=(256,1,1) lds=4096")
E("; @launch kernel=k2_kernel grid=(256,1,1) block=(256,1,1) lds=20480")
E("; @launch kernel=k3_kernel grid=(128,1,1) block=(256,1,1) lds=10240")
E("; @launch kernel=k4_kernel grid=(7,1,1) block=(256,1,1) lds=2048")
E('.amdgcn_target "amdgcn-amd-amdhsa--gfx950"')
E(".text")

def srd(dst, base_lo, nbytes):
    I(f"s_mov_b32 s{dst}, s{base_lo}")
    I(f"s_and_b32 s{dst+1}, s{base_lo+1}, 0xffff")
    I(f"s_mov_b32 s{dst+2}, {nbytes}")
    I(f"s_mov_b32 s{dst+3}, 0x00020000")

def kernel_begin(name):
    E(f".globl {name}")
    E(".p2align 8")
    E(f".type {name},@function")
    E(f"{name}:")

def row_reduce(op, v, tmp=None):
    for r in (8, 4, 2, 1):
        I("s_nop 1")
        I(f"{op}_dpp v{v}, v{v}, v{v} row_ror:{r} row_mask:0xf bank_mask:0xf")

def wave_sum_to_sgpr(v, s_tmp, vtmp):
    row_reduce("v_add_f32", v)
    I("s_nop 1")
    I(f"v_readlane_b32 s{s_tmp}, v{v}, 0")
    I(f"v_readlane_b32 s{s_tmp+1}, v{v}, 16")
    I(f"v_readlane_b32 s{s_tmp+2}, v{v}, 32")
    I(f"v_readlane_b32 s{s_tmp+3}, v{v}, 48")
    I("s_nop 1")
    I(f"v_mov_b32 v{vtmp}, s{s_tmp}")
    I(f"v_add_f32 v{vtmp}, s{s_tmp+1}, v{vtmp}")
    I(f"v_add_f32 v{vtmp}, s{s_tmp+2}, v{vtmp}")
    I(f"v_add_f32 v{vtmp}, s{s_tmp+3}, v{vtmp}")

def rbf(v, tmp=None):
    I(f"v_cvt_pk_bf16_f32 v{v}, v{v}, v{v}")
    I(f"v_and_b32 v{v}, 0xffff0000, v{v}")

def ln_stats(vx, n, vmean, vden, vt, st):
    I(f"v_add_f32 v{vt}, v{vx}, v{vx+1}")
    for i in range(2, n):
        I(f"v_add_f32 v{vt}, v{vt}, v{vx+i}")
    wave_sum_to_sgpr(vt, st, vmean)
    I(f"v_mul_f32 v{vmean}, 0x3b124925, v{vmean}")
    I(f"v_sub_f32 v{vt+1}, v{vx}, v{vmean}")
    I(f"v_mul_f32 v{vt}, v{vt+1}, v{vt+1}")
    for i in range(1, n):
        I(f"v_sub_f32 v{vt+1}, v{vx+i}, v{vmean}")
        I(f"v_fmac_f32 v{vt}, v{vt+1}, v{vt+1}")
    wave_sum_to_sgpr(vt, st, vden)
    I(f"v_mul_f32 v{vden}, 0x3b124925, v{vden}")
    rbf(vden)
    I(f"v_add_f32 v{vden}, 0x3727c5ac, v{vden}")
    rbf(vden)
    I(f"v_sqrt_f32 v{vden}, v{vden}")
    I("s_nop 0")
    rbf(vden)
    rbf(vmean)

def ln_apply(v, vmean, vden, vt):
    I(f"v_sub_f32 v{v}, v{v}, v{vmean}")
    rbf(v)
    I(f"v_rcp_f32 v{vt}, v{vden}")
    I("s_nop 0")
    I(f"v_mul_f32 v{vt+1}, v{v}, v{vt}")
    I(f"v_fma_f32 v{v}, -v{vt+1}, v{vden}, v{v}")
    I(f"v_fma_f32 v{v}, v{v}, v{vt}, v{vt+1}")
    rbf(v)

kd = []
def kernel_end(name, vgpr, sgpr=102):
    I("s_endpgm")
    kd.append((name, vgpr, sgpr))

kernel_begin("k1_kernel")
I("s_cmp_ge_u32 s2, 240")
I("s_cbranch_scc1 K1_END")
I("s_load_dwordx2 s[4:5], s[0:1], 0")
I("s_load_dwordx2 s[6:7], s[0:1], 24")
I("s_load_dwordx2 s[8:9], s[0:1], 96")
I("s_load_dwordx2 s[10:11], s[0:1], 48")
I("s_load_dwordx2 s[12:13], s[0:1], 56")
I("s_load_dwordx2 s[14:15], s[0:1], 64")
I("s_load_dwordx2 s[16:17], s[0:1], 72")
I("v_and_b32 v1, 63, v0")
I("v_lshrrev_b32 v2, 6, v0")
I("s_nop 0")
I("v_readfirstlane_b32 s3, v2")
I("s_waitcnt lgkmcnt(0)")
srd(20, 4, 896)
srd(24, 8, WS_SIZE)
I("v_lshlrev_b32 v3, 1, v1")
for i in range(7):
    I(f"buffer_load_ushort v{10+i}, v3, s[20:23], 0 offen offset:{i*128}")
I("s_cmp_ge_u32 s2, 128")
I("s_cbranch_scc1 K1_MLP")
srd(28, 6, 448*4096*2)
I("v_lshrrev_b32 v4, 2, v1")
I("s_lshl_b32 s18, s3, 4")
I("v_add_u32 v4, s18, v4")
I("v_lshlrev_b32 v5, 1, v4")
for i in range(7):
    I(f"buffer_load_ushort v{20+i}, v5, s[20:23], 0 offen offset:{i*128}")
I("v_and_b32 v6, 3, v1")
I("v_lshlrev_b32 v6, 4, v6")
I("v_lshl_add_u32 v6, v4, 13, v6")
I("s_lshl_b32 s18, s2, 6")
I("v_add_u32 v6, s18, v6")
for i in range(7):
    I(f"s_mov_b32 s19, {i*64*8192}")
    I(f"buffer_load_dwordx4 v[{32+4*i}:{35+4*i}], v6, s[28:31], s19 offen")
I("s_waitcnt vmcnt(14)")
for i in range(7):
    I(f"v_lshlrev_b32 v{10+i}, 16, v{10+i}")
ln_stats(10, 7, 7, 8, 60, 40)
I("s_waitcnt vmcnt(7)")
for i in range(7):
    I(f"v_lshlrev_b32 v{20+i}, 16, v{20+i}")
    ln_apply(20+i, 7, 8, 60)
for c in range(8):
    I(f"v_mov_b32 v{64+c}, 0")
for i in range(7):
    I(f"s_waitcnt vmcnt({6-i})")
    for c in range(4):
        I(f"v_lshlrev_b32 v60, 16, v{32+4*i+c}")
        I(f"v_and_b32 v61, 0xffff0000, v{32+4*i+c}")
        I(f"v_fmac_f32 v{64+2*c}, v{20+i}, v60")
        I(f"v_fmac_f32 v{64+2*c+1}, v{20+i}, v61")
for c in range(8):
    I("s_nop 1")
    I(f"v_add_f32_dpp v{64+c}, v{64+c}, v{64+c} row_ror:4 row_mask:0xf bank_mask:0xf")
    I("s_nop 1")
    I(f"v_add_f32_dpp v{64+c}, v{64+c}, v{64+c} row_ror:8 row_mask:0xf bank_mask:0xf")
I("v_lshrrev_b32 v9, 4, v1")
I("s_lshl_b32 s18, s3, 2")
I("v_add_u32 v9, s18, v9")
I("v_lshlrev_b32 v9, 7, v9")
I("v_and_b32 v60, 3, v1")
I("v_lshl_add_u32 v9, v60, 5, v9")
I("v_and_b32 v60, 15, v1")
I("v_cmp_gt_u32 vcc, 4, v60")
I("s_and_saveexec_b64 s[36:37], vcc")
I("ds_write_b128 v9, v[64:67]")
I("ds_write_b128 v9, v[68:71] offset:16")
I("s_mov_b64 exec, s[36:37]")
I("s_waitcnt lgkmcnt(0)")
I("s_barrier")
I("v_cmp_gt_u32 vcc, 32, v0")
I("s_and_saveexec_b64 s[36:37], vcc")
I("s_cbranch_execz K1_QDONE")
I("v_lshlrev_b32 v9, 2, v0")
for p in range(16):
    I(f"ds_read_b32 v{80+p}, v9 offset:{p*128}")
I("s_waitcnt lgkmcnt(0)")
for p in range(1, 16):
    I(f"v_add_f32 v80, v80, v{80+p}")
I("v_cvt_pk_bf16_f32 v80, v80, v80")
I("v_lshlrev_b32 v9, 1, v0")
I("s_lshl_b32 s18, s2, 6")
I("v_add_u32 v9, s18, v9")
I(f"buffer_store_short v80, v9, s[24:27], 0 offen offset:{WS_Q}")
E("K1_QDONE:")
I("s_mov_b64 exec, s[36:37]")
I("s_branch K1_END")
E("K1_MLP:")
srd(28, 10, 3584)
srd(32, 12, 3584)
srd(36, 14, 3584)
I("s_sub_u32 s18, s2, 128")
I("s_lshl_b32 s18, s18, 2")
I("s_add_u32 s18, s18, s3")
I("s_lshl_b32 s19, s18, 1")
I("v_mov_b32 v4, s19")
I("buffer_load_ushort v20, v4, s[20:23], 0 offen")
I("v_lshlrev_b32 v5, 3, v1")
for i in range(7):
    I(f"buffer_load_dwordx2 v[{32+2*i}:{33+2*i}], v5, s[28:31], 0 offen offset:{i*512}")
    I(f"buffer_load_dwordx2 v[{48+2*i}:{49+2*i}], v5, s[32:35], 0 offen offset:{i*512}")
    I(f"buffer_load_dwordx2 v[{64+2*i}:{65+2*i}], v5, s[36:39], 0 offen offset:{i*512}")
I("s_load_dword s44, s[16:17], 0")
I("s_waitcnt vmcnt(22)")
for i in range(7):
    I(f"v_lshlrev_b32 v{10+i}, 16, v{10+i}")
ln_stats(10, 7, 7, 8, 80, 40)
I("s_waitcnt vmcnt(21)")
I("v_lshlrev_b32 v20, 16, v20")
for i in range(7):
    ln_apply(10+i, 7, 8, 80)
ln_apply(20, 7, 8, 80)
ln_stats(10, 7, 7, 8, 80, 40)
ln_apply(20, 7, 8, 80)
I("v_mov_b32 v21, 0")
I("s_waitcnt vmcnt(0)")
I("s_mov_b32 s45, 0x3d372713")
I("s_mov_b32 s46, 0xc0135761")
for i in range(7):
    for c in range(4):
        reg = 32+2*i+(c>>1)
        if c & 1:
            I(f"v_and_b32 v82, 0xffff0000, v{reg}")
            I(f"v_and_b32 v83, 0xffff0000, v{reg+16}")
            I(f"v_and_b32 v84, 0xffff0000, v{reg+32}")
        else:
            I(f"v_lshlrev_b32 v82, 16, v{reg}")
            I(f"v_lshlrev_b32 v83, 16, v{reg+16}")
            I(f"v_lshlrev_b32 v84, 16, v{reg+32}")
        I("v_mul_f32 v82, v20, v82")
        rbf(82)
        I("v_add_f32 v82, v82, v83")
        rbf(82)
        I("v_mul_f32 v83, v82, v82")
        I("v_mul_f32 v83, s45, v83")
        I("v_fma_f32 v83, v83, v82, v82")
        I("v_mul_f32 v83, s46, v83")
        I("v_exp_f32 v83, v83")
        I("s_nop 0")
        I("v_add_f32 v83, 1.0, v83")
        I("v_rcp_f32 v83, v83")
        I("s_nop 0")
        I("v_mul_f32 v82, v82, v83")
        rbf(82)
        I("v_fmac_f32 v21, v82, v84")
wave_sum_to_sgpr(21, 40, 22)
rbf(22)
I("s_waitcnt lgkmcnt(0)")
I("s_lshl_b32 s44, s44, 16")
I("v_add_f32 v22, s44, v22")
rbf(22)
I("v_cmp_eq_u32 vcc, 0, v1")
I("s_and_saveexec_b64 s[36:37], vcc")
I("s_lshl_b32 s19, s18, 2")
I("v_mov_b32 v4, s19")
I(f"s_mov_b32 s19, {WS_Y}")
I("buffer_store_dword v22, v4, s[24:27], s19 offen")
I("s_mov_b64 exec, s[36:37]")
E("K1_END:")
kernel_end("k1_kernel", 96)

kernel_begin("k2_kernel")
I("s_cmp_ge_u32 s2, 256")
I("s_cbranch_scc1 K2_END")
I("s_load_dwordx2 s[4:5], s[0:1], 8")
I("s_load_dwordx2 s[6:7], s[0:1], 16")
I("s_load_dwordx2 s[8:9], s[0:1], 96")
I("v_and_b32 v1, 63, v0")
I("v_lshrrev_b32 v2, 6, v0")
I("s_nop 0")
I("v_readfirstlane_b32 s3, v2")
I("s_lshr_b32 s10, s2, 5")
I("s_and_b32 s11, s2, 31")
I("s_lshl_b32 s12, s10, 24")
I("s_lshl_b32 s13, s11, 16")
I("s_add_u32 s12, s12, s13")
I(f"s_add_u32 s12, s12, {28672*512}")
I("s_waitcnt lgkmcnt(0)")
I("s_add_u32 s4, s4, s12")
I("s_addc_u32 s5, s5, 0")
I("s_add_u32 s6, s6, s12")
I("s_addc_u32 s7, s7, 0")
srd(20, 4, 65536)
srd(24, 6, 65536)
srd(28, 8, WS_SIZE)
I("v_and_b32 v3, 15, v1")
I("v_lshrrev_b32 v4, 4, v1")
I("v_lshlrev_b32 v5, 9, v3")
I("v_lshl_add_u32 v5, v4, 4, v5")
I("s_lshl_b32 s14, s10, 10")
I("v_add_u32 v5, s14, v5")
I("v_cmp_gt_u32 vcc, 2, v3")
I("v_mov_b32 v6, 0x7ffffff0")
I("s_nop 1")
I("v_cndmask_b32 v5, v6, v5, vcc")
for st in range(8):
    I(f"buffer_load_dwordx4 v[{160+4*st}:{163+4*st}], v5, s[28:31], 0 offen offset:{WS_Q+st*64}")
I("s_lshl_b32 s14, s3, 5")
I("v_add_u32 v7, s14, v3")
I("v_lshlrev_b32 v7, 9, v7")
I("v_lshl_add_u32 v7, v4, 4, v7")
I("s_mov_b32 s15, 8192")
for b in range(2):
    for st in range(8):
        r = 16 + (b*8+st)*4
        so = "s15" if b else "0"
        I(f"buffer_load_dwordx4 v[{r}:{r+3}], v7, s[20:23], {so} offen offset:{st*64}")
I("v_lshrrev_b32 v8, 5, v1")
I("v_add_u32 v9, s14, v8")
I("v_lshlrev_b32 v9, 9, v9")
I("v_and_b32 v10, 31, v1")
I("v_lshl_add_u32 v9, v10, 4, v9")
I("s_mov_b32 s16, 4096")
I("s_mov_b32 s17, 12288")
for i in range(16):
    r = 80 + i*4
    so = ["0", "s16", "s15", "s17"][i >> 2]
    I(f"buffer_load_dwordx4 v[{r}:{r+3}], v9, s[24:27], {so} offen offset:{(i&3)*1024}")
for b in range(2):
    I(f"s_waitcnt vmcnt({16 + (8 if b == 0 else 0)})")
    for st in range(8):
        r = 16 + (b*8+st)*4
        c = "0" if st == 0 else f"v[{192+4*b}:{195+4*b}]"
        I(f"v_mfma_f32_16x16x32_bf16 v[{192+4*b}:{195+4*b}], v[{160+4*st}:{163+4*st}], v[{r}:{r+3}], {c}")
I("s_nop 7")
I("s_nop 3")
I("v_cvt_pk_bf16_f32 v204, v192, v193")
I("v_cvt_pk_bf16_f32 v205, v196, v197")
I("v_lshlrev_b32 v200, 16, v204")
I("v_and_b32 v201, 0xffff0000, v204")
I("v_lshlrev_b32 v202, 16, v205")
I("v_and_b32 v203, 0xffff0000, v205")
for k in range(4):
    I(f"v_mul_f32 v{200+k}, 0x3d800000, v{200+k}")
I("v_max_f32 v204, v200, v202")
I("v_max_f32 v205, v201, v203")
row_reduce("v_max_f32", 204)
row_reduce("v_max_f32", 205)
I("s_lshl_b32 s18, s3, 3")
I("v_mov_b32 v206, s18")
I("v_cmp_eq_u32 vcc, 0, v1")
I("s_and_saveexec_b64 s[36:37], vcc")
I("ds_write_b64 v206, v[204:205]")
I("s_mov_b64 exec, s[36:37]")
I("s_waitcnt lgkmcnt(0)")
I("s_barrier")
I("v_mov_b32 v207, 0")
I("ds_read_b128 v[208:211], v207")
I("ds_read_b128 v[212:215], v207 offset:16")
I("s_waitcnt lgkmcnt(0)")
I("v_max_f32 v208, v208, v210")
I("v_max_f32 v209, v209, v211")
I("v_max_f32 v212, v212, v214")
I("v_max_f32 v213, v213, v215")
I("v_max_f32 v208, v208, v212")
I("v_max_f32 v209, v209, v213")
I("s_mov_b32 s19, 0x3fb8aa3b")
for k in range(4):
    I(f"v_sub_f32 v{200+k}, v{200+k}, v{208+(k&1)}")
    I(f"v_mul_f32 v{200+k}, s19, v{200+k}")
for k in range(4):
    I(f"v_exp_f32 v{200+k}, v{200+k}")
I("s_nop 0")
I("v_add_f32 v204, v200, v202")
I("v_add_f32 v205, v201, v203")
row_reduce("v_add_f32", 204)
row_reduce("v_add_f32", 205)
I("s_lshl_b32 s18, s3, 8")
I("v_lshlrev_b32 v207, 3, v1")
I("v_add_u32 v207, s18, v207")
I("v_cmp_gt_u32 vcc, 16, v1")
I("s_and_saveexec_b64 s[36:37], vcc")
I("ds_write_b64 v207, v[200:201] offset:256")
I("ds_write_b64 v207, v[202:203] offset:384")
I("s_mov_b64 exec, s[36:37]")
I("v_cmp_eq_u32 vcc, 0, v1")
I("s_and_saveexec_b64 s[36:37], vcc")
I("ds_write_b64 v206, v[204:205] offset:32")
I("s_mov_b64 exec, s[36:37]")
I("s_waitcnt lgkmcnt(0)")
I("v_lshlrev_b32 v207, 3, v8")
I("v_add_u32 v207, s18, v207")
for i in range(16):
    I(f"ds_read_b64 v[{216+2*i}:{217+2*i}], v207 offset:{256+i*16}")
for c in range(16):
    I(f"v_mov_b32 v{144+c}, 0")
for i in range(16):
    I(f"s_waitcnt vmcnt({15-i}) lgkmcnt({min(15-i, 15)})")
    r = 80 + i*4
    for c in range(4):
        I(f"v_lshlrev_b32 v10, 16, v{r+c}")
        I(f"v_and_b32 v11, 0xffff0000, v{r+c}")
        I(f"v_fmac_f32 v{144+2*c}, v{216+2*i}, v10")
        I(f"v_fmac_f32 v{144+2*c+1}, v{216+2*i}, v11")
        I(f"v_fmac_f32 v{152+2*c}, v{217+2*i}, v10")
        I(f"v_fmac_f32 v{152+2*c+1}, v{217+2*i}, v11")
I("s_lshl_b32 s18, s3, 1")
I("v_add_u32 v10, s18, v8")
I("v_lshlrev_b32 v10, 11, v10")
I("v_and_b32 v11, 31, v1")
I("v_lshl_add_u32 v10, v11, 5, v10")
I("ds_write_b128 v10, v[144:147] offset:4096")
I("ds_write_b128 v10, v[148:151] offset:4112")
I("ds_write_b128 v10, v[152:155] offset:5120")
I("ds_write_b128 v10, v[156:159] offset:5136")
I("s_waitcnt lgkmcnt(0)")
I("s_barrier")
I("v_lshlrev_b32 v10, 3, v0")
for p in range(8):
    I(f"ds_read_b64 v[{16+2*p}:{17+2*p}], v10 offset:{4096+p*2048}")
I("v_mov_b32 v207, 0")
I("ds_read_b128 v[40:43], v207 offset:32")
I("ds_read_b128 v[44:47], v207 offset:48")
I("s_waitcnt lgkmcnt(0)")
for p in range(1, 8):
    I(f"v_add_f32 v16, v16, v{16+2*p}")
    I(f"v_add_f32 v17, v17, v{17+2*p}")
I("s_lshl_b32 s18, s2, 11")
I("v_add_u32 v10, s18, v10")
I(f"s_mov_b32 s19, {WS_OP}")
I("buffer_store_dwordx2 v[16:17], v10, s[28:31], s19 offen")
I("v_add_f32 v40, v40, v42")
I("v_add_f32 v41, v41, v43")
I("v_add_f32 v44, v44, v46")
I("v_add_f32 v45, v45, v47")
I("v_add_f32 v49, v40, v44")
I("v_add_f32 v51, v41, v45")
I("v_mov_b32 v48, v208")
I("v_mov_b32 v50, v209")
I("v_cmp_eq_u32 vcc, 0, v0")
I("s_and_saveexec_b64 s[36:37], vcc")
I("s_lshl_b32 s18, s2, 4")
I("v_mov_b32 v10, s18")
I(f"s_mov_b32 s19, {WS_ML}")
I("buffer_store_dwordx4 v[48:51], v10, s[28:31], s19 offen")
I("s_mov_b64 exec, s[36:37]")
E("K2_END:")
kernel_end("k2_kernel", 248)

kernel_begin("k3_kernel")
I("s_cmp_ge_u32 s2, 128")
I("s_cbranch_scc1 K3_END")
I("s_load_dwordx2 s[4:5], s[0:1], 32")
I("s_load_dwordx2 s[8:9], s[0:1], 96")
I("v_and_b32 v1, 63, v0")
I("v_lshrrev_b32 v2, 6, v0")
I("s_nop 0")
I("v_readfirstlane_b32 s3, v2")
I("s_lshr_b32 s10, s2, 3")
I("s_and_b32 s11, s2, 7")
I("s_lshr_b32 s12, s10, 1")
I("s_and_b32 s13, s10, 1")
I("s_waitcnt lgkmcnt(0)")
srd(20, 4, 4096*448*2)
srd(28, 8, WS_SIZE)
I("s_lshl_b32 s14, s2, 5")
I("s_lshl_b32 s15, s3, 3")
I("s_add_u32 s14, s14, s15")
I("s_mul_i32 s14, s14, 896")
I("v_lshlrev_b32 v3, 4, v1")
I("v_add_u32 v3, s14, v3")
I("v_cmp_gt_u32 vcc, 56, v1")
I("v_mov_b32 v6, 0x7ffffff0")
I("s_nop 1")
I("v_cndmask_b32 v3, v6, v3, vcc")
for i in range(4):
    I(f"buffer_load_dwordx4 v[{64+4*i}:{67+4*i}], v3, s[20:23], 0 offen offset:{i*896}")
I("s_mov_b32 s16, 3584")
for i in range(4):
    I(f"buffer_load_dwordx4 v[{80+4*i}:{83+4*i}], v3, s[20:23], s16 offen offset:{i*896}")
I("v_and_b32 v4, 31, v1")
I("s_lshl_b32 s14, s12, 9")
I("s_lshl_b32 s15, s13, 3")
I("s_add_u32 s14, s14, s15")
I(f"s_add_u32 s14, s14, {WS_ML}")
I("v_lshlrev_b32 v5, 4, v4")
I("buffer_load_dwordx2 v[10:11], v5, s[28:31], s14 offen")
I("s_lshl_b32 s14, s12, 16")
I("s_lshl_b32 s15, s13, 10")
I("s_add_u32 s14, s14, s15")
I("s_lshl_b32 s15, s11, 7")
I("s_add_u32 s14, s14, s15")
I(f"s_add_u32 s14, s14, {WS_OP}")
I("v_lshlrev_b32 v5, 2, v4")
for s in range(32):
    I(f"s_add_u32 s15, s14, {s*2048}")
    I(f"buffer_load_dword v{100+s}, v5, s[28:31], s15 offen")
I("s_waitcnt vmcnt(32)")
I("v_mov_b32 v12, v10")
row_reduce("v_max_f32", 12)
I("s_nop 1")
I("v_readlane_b32 s40, v12, 0")
I("v_readlane_b32 s41, v12, 16")
I("s_nop 1")
I("v_mov_b32 v12, s40")
I("v_max_f32 v12, s41, v12")
I("v_sub_f32 v10, v10, v12")
I("v_mul_f32 v10, 0x3fb8aa3b, v10")
I("v_exp_f32 v10, v10")
I("s_nop 0")
I("v_mul_f32 v11, v10, v11")
row_reduce("v_add_f32", 11)
I("s_nop 1")
I("v_readlane_b32 s40, v11, 0")
I("v_readlane_b32 s41, v11, 16")
I("s_nop 1")
I("v_mov_b32 v11, s40")
I("v_add_f32 v11, s41, v11")
I("v_rcp_f32 v13, v11")
I("s_nop 0")
I("v_mul_f32 v10, v10, v13")
I("s_lshl_b32 s18, s3, 9")
I("v_add_u32 v14, s18, v5")
I("v_cmp_gt_u32 vcc, 32, v1")
I("s_and_saveexec_b64 s[36:37], vcc")
I("ds_write_b32 v14, v10")
I("s_mov_b64 exec, s[36:37]")
I("s_waitcnt lgkmcnt(0)")
I("v_mov_b32 v15, s18")
for g in range(8):
    I(f"ds_read_b128 v[{16+4*g}:{19+4*g}], v15 offset:{g*16}")
I("s_waitcnt vmcnt(0) lgkmcnt(0)")
I("v_mul_f32 v48, v16, v100")
for s in range(1, 32):
    I(f"v_fmac_f32 v48, v{16+s}, v{100+s}")
rbf(48)
I("s_and_saveexec_b64 s[36:37], vcc")
I("ds_write_b32 v14, v48 offset:128")
I("s_mov_b64 exec, s[36:37]")
I("s_waitcnt lgkmcnt(0)")
I("s_lshl_b32 s19, s3, 5")
I("s_add_u32 s19, s19, s18")
I("v_mov_b32 v15, s19")
I("ds_read_b128 v[16:19], v15 offset:128")
I("ds_read_b128 v[20:23], v15 offset:144")
I("s_waitcnt lgkmcnt(0)")
for c in range(8):
    I(f"v_mov_b32 v{32+c}, 0")
for i in range(8):
    for c in range(4):
        I(f"v_lshlrev_b32 v50, 16, v{64+4*i+c}")
        I(f"v_and_b32 v51, 0xffff0000, v{64+4*i+c}")
        I(f"v_fmac_f32 v{32+2*c}, v{16+i}, v50")
        I(f"v_fmac_f32 v{32+2*c+1}, v{16+i}, v51")
I("s_mul_i32 s18, s3, 1792")
I("v_lshlrev_b32 v14, 5, v1")
I("v_add_u32 v14, s18, v14")
I("v_cmp_gt_u32 vcc, 56, v1")
I("s_and_saveexec_b64 s[36:37], vcc")
I("ds_write_b128 v14, v[32:35] offset:2048")
I("ds_write_b128 v14, v[36:39] offset:2064")
I("s_mov_b64 exec, s[36:37]")
I("s_waitcnt lgkmcnt(0)")
I("s_barrier")
I("v_cmp_gt_u32 vcc, 224, v0")
I("s_and_saveexec_b64 s[36:37], vcc")
I("s_cbranch_execz K3_DONE")
I("v_lshlrev_b32 v14, 3, v0")
for p in range(4):
    I(f"ds_read_b64 v[{16+2*p}:{17+2*p}], v14 offset:{2048+p*1792}")
I("s_waitcnt lgkmcnt(0)")
for p in range(1, 4):
    I(f"v_add_f32 v16, v16, v{16+2*p}")
    I(f"v_add_f32 v17, v17, v{17+2*p}")
I("s_mul_i32 s18, s2, 1792")
I(f"s_add_u32 s18, s18, {WS_P3}")
I("buffer_store_dwordx2 v[16:17], v14, s[28:31], s18 offen")
E("K3_DONE:")
I("s_mov_b64 exec, s[36:37]")
E("K3_END:")
kernel_end("k3_kernel", 136)

kernel_begin("k4_kernel")
I("s_cmp_ge_u32 s2, 7")
I("s_cbranch_scc1 K4_END")
I("s_load_dwordx2 s[4:5], s[0:1], 0")
I("s_load_dwordx2 s[6:7], s[0:1], 80")
I("s_load_dwordx2 s[8:9], s[0:1], 96")
I("v_and_b32 v1, 63, v0")
I("v_lshrrev_b32 v2, 6, v0")
I("s_waitcnt lgkmcnt(0)")
srd(20, 4, 896)
srd(24, 6, 896)
srd(28, 8, WS_SIZE)
I("s_lshl_b32 s10, s2, 6")
I("v_add_u32 v3, s10, v1")
I("v_lshlrev_b32 v4, 2, v3")
I("v_mul_u32_u24 v5, 57344, v2")
I("v_add_u32 v5, v5, v4")
for p in range(32):
    I(f"s_mov_b32 s11, {WS_P3 + p*1792}")
    I(f"buffer_load_dword v{16+p}, v5, s[28:31], s11 offen")
I("v_lshlrev_b32 v6, 1, v3")
I("buffer_load_ushort v8, v6, s[20:23], 0 offen")
I(f"s_mov_b32 s11, {WS_Y}")
I("buffer_load_dword v9, v4, s[28:31], s11 offen")
I("s_waitcnt vmcnt(0)")
for p in range(1, 32):
    I(f"v_add_f32 v16, v16, v{16+p}")
I("v_lshlrev_b32 v7, 2, v0")
I("ds_write_b32 v7, v16")
I("s_waitcnt lgkmcnt(0)")
I("s_barrier")
I("v_cmp_gt_u32 vcc, 64, v0")
I("s_and_saveexec_b64 s[36:37], vcc")
I("s_cbranch_execz K4_DONE")
for p in range(4):
    I(f"ds_read_b32 v{50+p}, v7 offset:{p*256}")
I("s_waitcnt lgkmcnt(0)")
I("v_add_f32 v50, v50, v51")
I("v_add_f32 v52, v52, v53")
I("v_add_f32 v50, v50, v52")
rbf(50)
I("v_lshlrev_b32 v8, 16, v8")
I("v_add_f32 v50, v8, v50")
rbf(50)
I("v_add_f32 v50, v50, v9")
I("v_cvt_pk_bf16_f32 v50, v50, v50")
I("buffer_store_short v50, v6, s[24:27], 0 offen")
E("K4_DONE:")
I("s_mov_b64 exec, s[36:37]")
E("K4_END:")
kernel_end("k4_kernel", 64)

E('.section .rodata,"a"')
for (name, vg, sg) in kd:
    E(".p2align 6")
    E(f".amdhsa_kernel {name}")
    E(f"  .amdhsa_next_free_vgpr {vg}")
    E(f"  .amdhsa_next_free_sgpr {sg}")
    E(f"  .amdhsa_accum_offset {(vg+3)//4*4}")
    E("  .amdhsa_group_segment_fixed_size 0")
    E("  .amdhsa_kernarg_size 104")
    E("  .amdhsa_user_sgpr_count 2")
    E("  .amdhsa_user_sgpr_kernarg_segment_ptr 1")
    E("  .amdhsa_system_sgpr_workgroup_id_x 1")
    E(".end_amdhsa_kernel")
open("cdna_kernels/%s.s" % NAME, "w").write("\n".join(out) + "\n")
```

```python
import sys
NAME = "parallel_sum__sliding_block_cached__mixer_token_mlp__decode"
out = []
def E(s=""):
    out.append(s)
def I(s):
    out.append("    " + s)

WS_Q = 0
WS_Y = 16384
WS_OP = 65536
WS_ML = WS_OP + 256*2*256*4
WS_P3 = 1048576
WS_SIZE = 536870912

hdr = open("cdna_kernels/%s.s.ref" % NAME).read().split("\n")
for l in hdr:
    if l.startswith("; @launch"):
        break
    E(l)
E("; @launch grid=(256,1,1) block=(512,1,1) lds=24576")
E('.amdgcn_target "amdgcn-amd-amdhsa--gfx950"')
E(".text")

def srd(dst, base_lo, nbytes):
    I(f"s_mov_b32 s{dst}, s{base_lo}")
    I(f"s_and_b32 s{dst+1}, s{base_lo+1}, 0xffff")
    I(f"s_mov_b32 s{dst+2}, {nbytes}")
    I(f"s_mov_b32 s{dst+3}, 0x00020000")

def kernel_begin(name):
    E(f".globl {name}")
    E(".p2align 8")
    E(f".type {name},@function")
    E(f"{name}:")

def row_reduce(op, v, tmp=None):
    for r in (8, 4, 2, 1):
        I("s_nop 1")
        I(f"{op}_dpp v{v}, v{v}, v{v} row_ror:{r} row_mask:0xf bank_mask:0xf")

def wave_sum_to_sgpr(v, s_tmp, vtmp):
    row_reduce("v_add_f32", v)
    I("s_nop 1")
    I(f"v_readlane_b32 s{s_tmp}, v{v}, 0")
    I(f"v_readlane_b32 s{s_tmp+1}, v{v}, 16")
    I(f"v_readlane_b32 s{s_tmp+2}, v{v}, 32")
    I(f"v_readlane_b32 s{s_tmp+3}, v{v}, 48")
    I("s_nop 1")
    I(f"v_mov_b32 v{vtmp}, s{s_tmp}")
    I(f"v_add_f32 v{vtmp}, s{s_tmp+1}, v{vtmp}")
    I(f"v_add_f32 v{vtmp}, s{s_tmp+2}, v{vtmp}")
    I(f"v_add_f32 v{vtmp}, s{s_tmp+3}, v{vtmp}")

def rbf(v, tmp=None):
    I(f"v_cvt_pk_bf16_f32 v{v}, v{v}, v{v}")
    I(f"v_and_b32 v{v}, 0xffff0000, v{v}")

def ln_stats(vx, n, vmean, vden, vt, st):
    I(f"v_add_f32 v{vt}, v{vx}, v{vx+1}")
    for i in range(2, n):
        I(f"v_add_f32 v{vt}, v{vt}, v{vx+i}")
    wave_sum_to_sgpr(vt, st, vmean)
    I(f"v_mul_f32 v{vmean}, 0x3b124925, v{vmean}")
    I(f"v_sub_f32 v{vt+1}, v{vx}, v{vmean}")
    I(f"v_mul_f32 v{vt}, v{vt+1}, v{vt+1}")
    for i in range(1, n):
        I(f"v_sub_f32 v{vt+1}, v{vx+i}, v{vmean}")
        I(f"v_fmac_f32 v{vt}, v{vt+1}, v{vt+1}")
    wave_sum_to_sgpr(vt, st, vden)
    I(f"v_mul_f32 v{vden}, 0x3b124925, v{vden}")
    rbf(vden)
    I(f"v_add_f32 v{vden}, 0x3727c5ac, v{vden}")
    rbf(vden)
    I(f"v_sqrt_f32 v{vden}, v{vden}")
    I("s_nop 0")
    rbf(vden)
    rbf(vmean)

def ln_apply(v, vmean, vden, vt):
    I(f"v_sub_f32 v{v}, v{v}, v{vmean}")
    rbf(v)
    I(f"v_rcp_f32 v{vt}, v{vden}")
    I("s_nop 0")
    I(f"v_mul_f32 v{vt+1}, v{v}, v{vt}")
    I(f"v_fma_f32 v{v}, -v{vt+1}, v{vden}, v{v}")
    I(f"v_fma_f32 v{v}, v{v}, v{vt}, v{vt+1}")
    rbf(v)

kd = []
def kernel_end(name, vgpr, sgpr=102):
    I("s_endpgm")
    kd.append((name, vgpr, sgpr))


KN = NAME + "_kernel"
SPIN = 200000
def poll(label, off, target):
    I("s_mov_b32 s47, 0")
    E(f"{label}:")
    I(f"v_mov_b32 v250, {off}")
    I("buffer_load_dword v251, v250, s[32:35], 0 offen sc0 sc1")
    I("s_waitcnt vmcnt(0)")
    I("v_readfirstlane_b32 s46, v251")
    I(f"s_cmp_ge_u32 s46, {target}")
    I(f"s_cbranch_scc1 {label}_ok")
    I("s_add_u32 s47, s47, 1")
    I(f"s_cmp_lt_u32 s47, {SPIN}")
    I("s_sleep 1")
    I(f"s_cbranch_scc1 {label}")
    E(f"{label}_ok:")
def signal(off_sgpr_or_imm):
    I("v_cmp_eq_u32 vcc, 0, v1")
    I("s_and_saveexec_b64 s[36:37], vcc")
    I(f"v_mov_b32 v250, {off_sgpr_or_imm}")
    I("v_mov_b32 v251, 1")
    I("buffer_atomic_add v251, v250, s[32:35], 0 offen sc1")
    I("s_mov_b64 exec, s[36:37]")

kernel_begin(KN)
I("s_cmp_ge_u32 s2, 256")
I("s_cbranch_scc1 L_END")
I("s_load_dwordx4 s[4:7], s[0:1], 8")
I("s_load_dwordx2 s[8:9], s[0:1], 96")
I("s_load_dwordx2 s[48:49], s[0:1], 88")
I("s_load_dwordx2 s[50:51], s[0:1], 0")
I("s_load_dwordx4 s[52:55], s[0:1], 24")
I("s_load_dwordx4 s[56:59], s[0:1], 48")
I("s_load_dwordx4 s[60:63], s[0:1], 64")
I("s_load_dwordx2 s[64:65], s[0:1], 80")
I("v_and_b32 v1, 63, v0")
I("v_lshrrev_b32 v2, 6, v0")
I("s_nop 0")
I("v_readfirstlane_b32 s3, v2")
I("s_lshr_b32 s10, s2, 5")
I("s_and_b32 s11, s2, 31")
I("s_waitcnt lgkmcnt(0)")
srd(28, 8, WS_SIZE)
srd(32, 48, 256)
I("s_cmp_ge_u32 s3, 4")
I("s_cbranch_scc1 L_HELP")
I("s_lshl_b32 s12, s10, 24")
I("s_lshl_b32 s13, s11, 16")
I("s_add_u32 s12, s12, s13")
I(f"s_add_u32 s12, s12, {28672*512}")
I("s_add_u32 s4, s4, s12")
I("s_addc_u32 s5, s5, 0")
I("s_add_u32 s6, s6, s12")
I("s_addc_u32 s7, s7, 0")
srd(20, 4, 65536)
srd(24, 6, 65536)
I("v_and_b32 v3, 15, v1")
I("v_lshrrev_b32 v4, 4, v1")
I("s_lshl_b32 s14, s3, 5")
I("v_add_u32 v7, s14, v3")
I("v_lshlrev_b32 v7, 9, v7")
I("v_lshl_add_u32 v7, v4, 4, v7")
I("s_mov_b32 s15, 8192")
for b in range(2):
    for st in range(8):
        r = 16 + (b*8+st)*4
        so = "s15" if b else "0"
        I(f"buffer_load_dwordx4 v[{r}:{r+3}], v7, s[20:23], {so} offen offset:{st*64}")
I("v_lshrrev_b32 v8, 5, v1")
I("v_add_u32 v9, s14, v8")
I("v_lshlrev_b32 v9, 9, v9")
I("v_and_b32 v10, 31, v1")
I("v_lshl_add_u32 v9, v10, 4, v9")
I("s_mov_b32 s16, 4096")
I("s_mov_b32 s17, 12288")
for i in range(16):
    r = 80 + i*4
    so = ["0", "s16", "s15", "s17"][i >> 2]
    I(f"buffer_load_dwordx4 v[{r}:{r+3}], v9, s[24:27], {so} offen offset:{(i&3)*1024}")
I("s_lshl_b32 s45, s10, 2")
I("s_mov_b32 s47, 0")
E("L_PQ:")
I("v_mov_b32 v250, s45")
I("buffer_load_dword v251, v250, s[32:35], 0 offen sc0 sc1")
I("s_waitcnt vmcnt(0)")
I("v_readfirstlane_b32 s46, v251")
I("s_cmp_ge_u32 s46, 32")
I("s_cbranch_scc1 L_PQ_ok")
I("s_add_u32 s47, s47, 1")
I(f"s_cmp_lt_u32 s47, {SPIN}")
I("s_sleep 1")
I("s_cbranch_scc1 L_PQ")
E("L_PQ_ok:")
I("v_lshlrev_b32 v5, 9, v3")
I("v_lshl_add_u32 v5, v4, 4, v5")
I("s_lshl_b32 s14, s10, 10")
I("v_add_u32 v5, s14, v5")
I("v_cmp_gt_u32 vcc, 2, v3")
I("v_mov_b32 v6, 0x7ffffff0")
I("s_nop 1")
I("v_cndmask_b32 v5, v6, v5, vcc")
for st in range(8):
    I(f"buffer_load_dwordx4 v[{160+4*st}:{163+4*st}], v5, s[28:31], 0 offen offset:{WS_Q+st*64} sc0 sc1")
I("s_waitcnt vmcnt(0)")
for b in range(2):
    for st in range(8):
        r = 16 + (b*8+st)*4
        c = "0" if st == 0 else f"v[{192+4*b}:{195+4*b}]"
        I(f"v_mfma_f32_16x16x32_bf16 v[{192+4*b}:{195+4*b}], v[{160+4*st}:{163+4*st}], v[{r}:{r+3}], {c}")
srd(40, 54, 4096*448*2)
I("s_lshl_b32 s18, s2, 4")
I("s_lshl_b32 s19, s3, 2")
I("s_add_u32 s18, s18, s19")
I("s_mul_i32 s18, s18, 896")
I("v_lshlrev_b32 v11, 4, v1")
I("v_add_u32 v11, s18, v11")
I("v_cmp_gt_u32 vcc, 56, v1")
I("s_nop 1")
I("v_cndmask_b32 v11, v6, v11, vcc")
I("s_nop 7")
I("v_cvt_pk_bf16_f32 v204, v192, v193")
I("v_cvt_pk_bf16_f32 v205, v196, v197")
I("v_lshlrev_b32 v200, 16, v204")
I("v_and_b32 v201, 0xffff0000, v204")
I("v_lshlrev_b32 v202, 16, v205")
I("v_and_b32 v203, 0xffff0000, v205")
for k in range(4):
    I(f"v_mul_f32 v{200+k}, 0x3d800000, v{200+k}")
I("v_max_f32 v204, v200, v202")
I("v_max_f32 v205, v201, v203")
row_reduce("v_max_f32", 204)
row_reduce("v_max_f32", 205)
I("s_lshl_b32 s18, s3, 3")
I("v_mov_b32 v206, s18")
I("v_cmp_eq_u32 vcc, 0, v1")
I("s_and_saveexec_b64 s[36:37], vcc")
I("ds_write_b64 v206, v[204:205]")
I("s_mov_b64 exec, s[36:37]")
I("s_waitcnt lgkmcnt(0)")
I("s_barrier")
I("v_mov_b32 v207, 0")
I("ds_read_b128 v[208:211], v207")
I("ds_read_b128 v[212:215], v207 offset:16")
I("s_waitcnt lgkmcnt(0)")
I("v_max_f32 v208, v208, v210")
I("v_max_f32 v209, v209, v211")
I("v_max_f32 v212, v212, v214")
I("v_max_f32 v213, v213, v215")
I("v_max_f32 v208, v208, v212")
I("v_max_f32 v209, v209, v213")
I("s_mov_b32 s19, 0x3fb8aa3b")
for k in range(4):
    I(f"v_sub_f32 v{200+k}, v{200+k}, v{208+(k&1)}")
    I(f"v_mul_f32 v{200+k}, s19, v{200+k}")
for k in range(4):
    I(f"v_exp_f32 v{200+k}, v{200+k}")
I("s_nop 0")
I("v_add_f32 v204, v200, v202")
I("v_add_f32 v205, v201, v203")
row_reduce("v_add_f32", 204)
row_reduce("v_add_f32", 205)
I("s_lshl_b32 s18, s3, 8")
I("v_lshlrev_b32 v207, 3, v1")
I("v_add_u32 v207, s18, v207")
I("v_cmp_gt_u32 vcc, 16, v1")
I("s_and_saveexec_b64 s[36:37], vcc")
I("ds_write_b64 v207, v[200:201] offset:256")
I("ds_write_b64 v207, v[202:203] offset:384")
I("s_mov_b64 exec, s[36:37]")
I("v_cmp_eq_u32 vcc, 0, v1")
I("s_and_saveexec_b64 s[36:37], vcc")
I("ds_write_b64 v206, v[204:205] offset:32")
I("s_mov_b64 exec, s[36:37]")
I("s_waitcnt lgkmcnt(0)")
I("v_lshlrev_b32 v207, 3, v8")
I("v_add_u32 v207, s18, v207")
for i in range(16):
    I(f"ds_read_b64 v[{160+2*i}:{161+2*i}], v207 offset:{256+i*16}")
for c in range(16):
    I(f"v_mov_b32 v{144+c}, 0")
for i in range(16):
    I(f"s_waitcnt lgkmcnt({15-i})")
    r = 80 + i*4
    for c in range(4):
        I(f"v_lshlrev_b32 v10, 16, v{r+c}")
        I(f"v_and_b32 v12, 0xffff0000, v{r+c}")
        I(f"v_fmac_f32 v{144+2*c}, v{160+2*i}, v10")
        I(f"v_fmac_f32 v{144+2*c+1}, v{160+2*i}, v12")
        I(f"v_fmac_f32 v{152+2*c}, v{161+2*i}, v10")
        I(f"v_fmac_f32 v{152+2*c+1}, v{161+2*i}, v12")
for i in range(4):
    I(f"buffer_load_dwordx4 v[{232+4*i}:{235+4*i}], v11, s[40:43], 0 offen offset:{i*896}")
I("s_lshl_b32 s18, s3, 1")
I("v_add_u32 v10, s18, v8")
I("v_lshlrev_b32 v10, 11, v10")
I("v_and_b32 v12, 31, v1")
I("v_lshl_add_u32 v10, v12, 5, v10")
I("ds_write_b128 v10, v[144:147] offset:4096")
I("ds_write_b128 v10, v[148:151] offset:4112")
I("ds_write_b128 v10, v[152:155] offset:5120")
I("ds_write_b128 v10, v[156:159] offset:5136")
I("s_waitcnt lgkmcnt(0)")
I("s_barrier")
I("v_lshlrev_b32 v10, 3, v0")
for p in range(8):
    I(f"ds_read_b64 v[{16+2*p}:{17+2*p}], v10 offset:{4096+p*2048}")
I("v_mov_b32 v207, 0")
I("ds_read_b128 v[40:43], v207 offset:32")
I("ds_read_b128 v[44:47], v207 offset:48")
I("s_waitcnt lgkmcnt(0)")
for p in range(1, 8):
    I(f"v_add_f32 v16, v16, v{16+2*p}")
    I(f"v_add_f32 v17, v17, v{17+2*p}")
I("s_lshl_b32 s18, s2, 11")
I("v_add_u32 v10, s18, v10")
I(f"s_mov_b32 s19, {WS_OP}")
I("buffer_store_dwordx2 v[16:17], v10, s[28:31], s19 offen sc0 sc1")
I("v_add_f32 v40, v40, v42")
I("v_add_f32 v41, v41, v43")
I("v_add_f32 v44, v44, v46")
I("v_add_f32 v45, v45, v47")
I("v_add_f32 v49, v40, v44")
I("v_add_f32 v51, v41, v45")
I("v_mov_b32 v48, v208")
I("v_mov_b32 v50, v209")
I("v_cmp_eq_u32 vcc, 0, v0")
I("s_and_saveexec_b64 s[36:37], vcc")
I("s_lshl_b32 s18, s2, 4")
I("v_mov_b32 v10, s18")
I(f"s_mov_b32 s19, {WS_ML}")
I("buffer_store_dwordx4 v[48:51], v10, s[28:31], s19 offen sc0 sc1")
I("s_mov_b64 exec, s[36:37]")
I("s_waitcnt vmcnt(0)")
I("s_barrier")
I("s_lshl_b32 s45, s10, 2")
I("s_add_u32 s45, s45, 64")
I("s_cmp_lg_u32 s3, 0")
I("s_cbranch_scc1 L_NOSIG1")
signal("s45")
E("L_NOSIG1:")
I("s_mov_b32 s47, 0")
E("L_PA:")
I("v_mov_b32 v250, s45")
I("buffer_load_dword v251, v250, s[32:35], 0 offen sc0 sc1")
I("s_waitcnt vmcnt(0)")
I("v_readfirstlane_b32 s46, v251")
I("s_cmp_ge_u32 s46, 32")
I("s_cbranch_scc1 L_PA_ok")
I("s_add_u32 s47, s47, 1")
I(f"s_cmp_lt_u32 s47, {SPIN}")
I("s_sleep 1")
I("s_cbranch_scc1 L_PA")
E("L_PA_ok:")
I("s_lshr_b32 s13, s11, 4")
I("v_and_b32 v4, 31, v1")
I("s_lshl_b32 s14, s10, 9")
I("s_lshl_b32 s15, s13, 3")
I("s_add_u32 s14, s14, s15")
I(f"s_add_u32 s14, s14, {WS_ML}")
I("v_lshlrev_b32 v5, 4, v4")
I("buffer_load_dwordx2 v[10:11], v5, s[28:31], s14 offen sc0 sc1")
I("s_lshl_b32 s14, s10, 16")
I("s_lshl_b32 s15, s13, 10")
I("s_add_u32 s14, s14, s15")
I("s_and_b32 s15, s11, 15")
I("s_lshl_b32 s15, s15, 6")
I("s_add_u32 s14, s14, s15")
I(f"s_add_u32 s14, s14, {WS_OP}")
I("v_lshlrev_b32 v5, 2, v3")
for s in range(32):
    I(f"s_add_u32 s15, s14, {s*2048}")
    I(f"buffer_load_dword v{100+s}, v5, s[28:31], s15 offen sc0 sc1")
I("s_waitcnt vmcnt(32)")
I("v_mov_b32 v12, v10")
row_reduce("v_max_f32", 12)
I("s_nop 1")
I("v_readlane_b32 s40, v12, 0")
I("v_readlane_b32 s41, v12, 16")
I("s_nop 1")
I("v_mov_b32 v12, s40")
I("v_max_f32 v12, s41, v12")
I("v_sub_f32 v10, v10, v12")
I("v_mul_f32 v10, 0x3fb8aa3b, v10")
I("v_exp_f32 v10, v10")
I("s_nop 0")
I("v_mul_f32 v11, v10, v11")
row_reduce("v_add_f32", 11)
I("s_nop 1")
I("v_readlane_b32 s40, v11, 0")
I("v_readlane_b32 s41, v11, 16")
I("s_nop 1")
I("v_mov_b32 v11, s40")
I("v_add_f32 v11, s41, v11")
I("v_rcp_f32 v13, v11")
I("s_nop 0")
I("v_mul_f32 v10, v10, v13")
I("s_lshl_b32 s18, s3, 9")
I("s_add_u32 s18, s18, 20480")
I("v_lshlrev_b32 v14, 2, v4")
I("v_add_u32 v14, s18, v14")
I("v_cmp_gt_u32 vcc, 32, v1")
I("s_and_saveexec_b64 s[36:37], vcc")
I("ds_write_b32 v14, v10")
I("s_mov_b64 exec, s[36:37]")
I("s_waitcnt lgkmcnt(0)")
I("v_mov_b32 v15, s18")
for g in range(8):
    I(f"ds_read_b128 v[{16+4*g}:{19+4*g}], v15 offset:{g*16}")
I("s_waitcnt vmcnt(0) lgkmcnt(0)")
I("v_mul_f32 v48, v16, v100")
for s in range(1, 32):
    I(f"v_fmac_f32 v48, v{16+s}, v{100+s}")
rbf(48)
I("v_cmp_gt_u32 vcc, 16, v1")
I("s_and_saveexec_b64 s[36:37], vcc")
I("ds_write_b32 v14, v48 offset:128")
I("s_mov_b64 exec, s[36:37]")
I("s_waitcnt lgkmcnt(0)")
I("s_lshl_b32 s19, s3, 4")
I("s_add_u32 s19, s19, s18")
I("v_mov_b32 v15, s19")
I("ds_read_b128 v[16:19], v15 offset:128")
I("s_waitcnt lgkmcnt(0)")
for c in range(8):
    I(f"v_mov_b32 v{32+c}, 0")
for i in range(4):
    for c in range(4):
        I(f"v_lshlrev_b32 v50, 16, v{232+4*i+c}")
        I(f"v_and_b32 v51, 0xffff0000, v{232+4*i+c}")
        I(f"v_fmac_f32 v{32+2*c}, v{16+i}, v50")
        I(f"v_fmac_f32 v{32+2*c+1}, v{16+i}, v51")
I("s_mul_i32 s18, s3, 1792")
I("v_lshlrev_b32 v14, 5, v1")
I("v_add_u32 v14, s18, v14")
I("v_cmp_gt_u32 vcc, 56, v1")
I("s_and_saveexec_b64 s[36:37], vcc")
I("ds_write_b128 v14, v[32:35] offset:4096")
I("ds_write_b128 v14, v[36:39] offset:4112")
I("s_mov_b64 exec, s[36:37]")
I("s_waitcnt lgkmcnt(0)")
I("s_barrier")
I("v_cmp_gt_u32 vcc, 224, v0")
I("s_and_saveexec_b64 s[36:37], vcc")
I("v_lshlrev_b32 v14, 3, v0")
for p in range(4):
    I(f"ds_read_b64 v[{16+2*p}:{17+2*p}], v14 offset:{4096+p*1792}")
I("s_waitcnt lgkmcnt(0)")
for p in range(1, 4):
    I(f"v_add_f32 v16, v16, v{16+2*p}")
    I(f"v_add_f32 v17, v17, v{17+2*p}")
I("s_mul_i32 s18, s2, 1792")
I(f"s_add_u32 s18, s18, {WS_P3}")
I("buffer_store_dwordx2 v[16:17], v14, s[28:31], s18 offen sc0 sc1")
I("s_mov_b64 exec, s[36:37]")
I("s_waitcnt vmcnt(0)")
I("s_barrier")
I("s_cmp_lg_u32 s3, 0")
I("s_cbranch_scc1 L_NOSIG2")
signal("128")
E("L_NOSIG2:")
I("s_cmp_ge_u32 s2, 7")
I("s_cbranch_scc1 L_END")
poll("L_PF", 128, 704)
srd(20, 50, 896)
srd(24, 64, 896)
I("s_lshl_b32 s10, s2, 6")
I("v_add_u32 v3, s10, v1")
I("v_lshlrev_b32 v4, 2, v3")
I("v_mul_u32_u24 v5, 114688, v2")
I("v_add_u32 v5, v5, v4")
for p in range(64):
    I(f"s_mov_b32 s11, {WS_P3 + p*1792}")
    I(f"buffer_load_dword v{16+p}, v5, s[28:31], s11 offen sc0 sc1")
    if p == 40:
        I("s_waitcnt vmcnt(20)")
I("v_lshlrev_b32 v6, 1, v3")
I("buffer_load_ushort v8, v6, s[20:23], 0 offen")
I(f"s_mov_b32 s11, {WS_Y}")
I("buffer_load_dword v9, v4, s[28:31], s11 offen sc0 sc1")
I("s_waitcnt vmcnt(0)")
for p in range(1, 64):
    I(f"v_add_f32 v16, v16, v{16+p}")
I("v_lshlrev_b32 v7, 2, v0")
I("ds_write_b32 v7, v16 offset:16384")
I("s_waitcnt lgkmcnt(0)")
I("s_barrier")
I("v_cmp_gt_u32 vcc, 64, v0")
I("s_and_saveexec_b64 s[36:37], vcc")
for p in range(4):
    I(f"ds_read_b32 v{90+p}, v7 offset:{16384+p*256}")
I("s_waitcnt lgkmcnt(0)")
I("v_add_f32 v90, v90, v91")
I("v_add_f32 v92, v92, v93")
I("v_add_f32 v90, v90, v92")
rbf(90)
I("v_lshlrev_b32 v8, 16, v8")
I("v_add_f32 v90, v8, v90")
rbf(90)
I("v_add_f32 v90, v90, v9")
I("v_cvt_pk_bf16_f32 v90, v90, v90")
I("buffer_store_short v90, v6, s[24:27], 0 offen")
I("s_mov_b64 exec, s[36:37]")
I("s_branch L_END")
E("L_HELP:")
srd(20, 50, 896)
I("v_lshlrev_b32 v3, 1, v1")
for i in range(7):
    I(f"buffer_load_ushort v{10+i}, v3, s[20:23], 0 offen offset:{i*128}")
I("s_cmp_eq_u32 s3, 4")
I("s_cbranch_scc0 L_MLP")
srd(24, 52, 448*4096*2)
I("v_lshrrev_b32 v4, 1, v1")
I("v_lshlrev_b32 v5, 1, v4")
for i in range(14):
    I(f"buffer_load_ushort v{20+i}, v5, s[20:23], 0 offen offset:{i*64}")
I("v_and_b32 v6, 1, v1")
I("v_lshlrev_b32 v6, 4, v6")
I("v_lshl_add_u32 v6, v4, 13, v6")
I("s_lshl_b32 s18, s2, 5")
I("v_add_u32 v6, s18, v6")
for i in range(14):
    I(f"s_mov_b32 s19, {i*32*8192}")
    I(f"buffer_load_dwordx4 v[{36+4*i}:{39+4*i}], v6, s[24:27], s19 offen")
I("s_waitcnt vmcnt(28)")
for i in range(7):
    I(f"v_lshlrev_b32 v{10+i}, 16, v{10+i}")
ln_stats(10, 7, 7, 8, 100, 40)
I("s_waitcnt vmcnt(14)")
for i in range(14):
    I(f"v_lshlrev_b32 v{20+i}, 16, v{20+i}")
    ln_apply(20+i, 7, 8, 100)
for c in range(8):
    I(f"v_mov_b32 v{104+c}, 0")
for i in range(14):
    I(f"s_waitcnt vmcnt({13-i})")
    for c in range(4):
        I(f"v_lshlrev_b32 v100, 16, v{36+4*i+c}")
        I(f"v_and_b32 v101, 0xffff0000, v{36+4*i+c}")
        I(f"v_fmac_f32 v{104+2*c}, v{20+i}, v100")
        I(f"v_fmac_f32 v{104+2*c+1}, v{20+i}, v101")
for c in range(8):
    for r in (2, 4, 8):
        I("s_nop 1")
        I(f"v_add_f32_dpp v{104+c}, v{104+c}, v{104+c} row_ror:{r} row_mask:0xf bank_mask:0xf")
I("v_lshrrev_b32 v9, 4, v1")
I("v_lshlrev_b32 v9, 6, v9")
I("v_and_b32 v100, 1, v1")
I("v_lshl_add_u32 v9, v100, 5, v9")
I("v_and_b32 v100, 15, v1")
I("v_cmp_gt_u32 vcc, 2, v100")
I("s_and_saveexec_b64 s[36:37], vcc")
I("ds_write_b128 v9, v[104:107] offset:22528")
I("ds_write_b128 v9, v[108:111] offset:22544")
I("s_mov_b64 exec, s[36:37]")
I("s_waitcnt lgkmcnt(0)")
I("v_cmp_gt_u32 vcc, 16, v1")
I("s_and_saveexec_b64 s[36:37], vcc")
I("v_lshlrev_b32 v9, 2, v1")
for p in range(4):
    I(f"ds_read_b32 v{112+p}, v9 offset:{22528+p*64}")
I("s_waitcnt lgkmcnt(0)")
I("v_add_f32 v112, v112, v113")
I("v_add_f32 v114, v114, v115")
I("v_add_f32 v112, v112, v114")
I("v_cvt_pk_bf16_f32 v112, v112, v112")
I("v_lshlrev_b32 v9, 1, v1")
I("s_lshl_b32 s18, s2, 5")
I("v_add_u32 v9, s18, v9")
I(f"buffer_store_short v112, v9, s[28:31], 0 offen offset:{WS_Q} sc0 sc1")
I("s_mov_b64 exec, s[36:37]")
I("s_waitcnt vmcnt(0)")
I("s_lshl_b32 s45, s10, 2")
signal("s45")
I("s_branch L_END")
E("L_MLP:")
I("s_mul_i32 s18, s2, 3")
I("s_add_u32 s18, s18, s3")
I("s_sub_u32 s18, s18, 5")
I("s_cmp_ge_u32 s18, 448")
I("s_cbranch_scc1 L_END")
srd(24, 56, 3584)
srd(68, 58, 3584)
srd(72, 60, 3584)
I("s_lshl_b32 s19, s18, 1")
I("v_mov_b32 v4, s19")
I("buffer_load_ushort v20, v4, s[20:23], 0 offen")
I("v_lshlrev_b32 v5, 3, v1")
for i in range(7):
    I(f"buffer_load_dwordx2 v[{32+2*i}:{33+2*i}], v5, s[24:27], 0 offen offset:{i*512}")
    I(f"buffer_load_dwordx2 v[{48+2*i}:{49+2*i}], v5, s[68:71], 0 offen offset:{i*512}")
    I(f"buffer_load_dwordx2 v[{64+2*i}:{65+2*i}], v5, s[72:75], 0 offen offset:{i*512}")
I("s_load_dword s44, s[62:63], 0")
I("s_waitcnt vmcnt(22)")
for i in range(7):
    I(f"v_lshlrev_b32 v{10+i}, 16, v{10+i}")
ln_stats(10, 7, 7, 8, 80, 40)
I("s_waitcnt vmcnt(21)")
I("v_lshlrev_b32 v20, 16, v20")
for i in range(7):
    ln_apply(10+i, 7, 8, 80)
ln_apply(20, 7, 8, 80)
ln_stats(10, 7, 7, 8, 80, 40)
ln_apply(20, 7, 8, 80)
I("v_mov_b32 v21, 0")
I("s_waitcnt vmcnt(0)")
I("s_mov_b32 s45, 0x3d372713")
I("s_mov_b32 s46, 0xc0135761")
for i in range(7):
    for c in range(4):
        reg = 32+2*i+(c>>1)
        if c & 1:
            I(f"v_and_b32 v82, 0xffff0000, v{reg}")
            I(f"v_and_b32 v83, 0xffff0000, v{reg+16}")
            I(f"v_and_b32 v84, 0xffff0000, v{reg+32}")
        else:
            I(f"v_lshlrev_b32 v82, 16, v{reg}")
            I(f"v_lshlrev_b32 v83, 16, v{reg+16}")
            I(f"v_lshlrev_b32 v84, 16, v{reg+32}")
        I("v_mul_f32 v82, v20, v82")
        rbf(82)
        I("v_add_f32 v82, v82, v83")
        rbf(82)
        I("v_mul_f32 v83, v82, v82")
        I("v_mul_f32 v83, s45, v83")
        I("v_fma_f32 v83, v83, v82, v82")
        I("v_mul_f32 v83, s46, v83")
        I("v_exp_f32 v83, v83")
        I("s_nop 0")
        I("v_add_f32 v83, 1.0, v83")
        I("v_rcp_f32 v83, v83")
        I("s_nop 0")
        I("v_mul_f32 v82, v82, v83")
        rbf(82)
        I("v_fmac_f32 v21, v82, v84")
wave_sum_to_sgpr(21, 40, 22)
rbf(22)
I("s_waitcnt lgkmcnt(0)")
I("s_lshl_b32 s44, s44, 16")
I("v_add_f32 v22, s44, v22")
rbf(22)
I("v_cmp_eq_u32 vcc, 0, v1")
I("s_and_saveexec_b64 s[36:37], vcc")
I("s_lshl_b32 s19, s18, 2")
I("v_mov_b32 v4, s19")
I(f"s_mov_b32 s19, {WS_Y}")
I("buffer_store_dword v22, v4, s[28:31], s19 offen sc0 sc1")
I("s_mov_b64 exec, s[36:37]")
I("s_waitcnt vmcnt(0)")
signal("128")
E("L_END:")
kernel_end(KN, 252)
E('.section .rodata,"a"')
for (name, vg, sg) in kd:
    E(".p2align 6")
    E(f".amdhsa_kernel {name}")
    E(f"  .amdhsa_next_free_vgpr {vg}")
    E(f"  .amdhsa_next_free_sgpr {sg}")
    E(f"  .amdhsa_accum_offset {(vg+3)//4*4}")
    E("  .amdhsa_group_segment_fixed_size 0")
    E("  .amdhsa_kernarg_size 104")
    E("  .amdhsa_user_sgpr_count 2")
    E("  .amdhsa_user_sgpr_kernarg_segment_ptr 1")
    E("  .amdhsa_system_sgpr_workgroup_id_x 1")
    E(".end_amdhsa_kernel")
open("cdna_kernels/%s.s" % NAME, "w").write("\n".join(out) + "\n")
```

```python
import sys
NAME = "parallel_sum__sliding_block_cached__mixer_token_mlp__decode"
out = []
def E(s=""):
    out.append(s)
def I(s):
    out.append("    " + s)

WS_Q = 0
WS_Y = 16384
WS_OP = 65536
WS_ML = WS_OP + 256*2*256*4
WS_P3 = 1048576
WS_SIZE = 536870912

hdr = open("cdna_kernels/%s.s.ref" % NAME).read().split("\n")
for l in hdr:
    if l.startswith("; @launch"):
        break
    E(l)
E("; @launch grid=(256,1,1) block=(512,1,1) lds=24576")
E('.amdgcn_target "amdgcn-amd-amdhsa--gfx950"')
E(".text")

def srd(dst, base_lo, nbytes):
    I(f"s_mov_b32 s{dst}, s{base_lo}")
    I(f"s_and_b32 s{dst+1}, s{base_lo+1}, 0xffff")
    I(f"s_mov_b32 s{dst+2}, {nbytes}")
    I(f"s_mov_b32 s{dst+3}, 0x00020000")

def kernel_begin(name):
    E(f".globl {name}")
    E(".p2align 8")
    E(f".type {name},@function")
    E(f"{name}:")

def row_reduce(op, v, tmp=None):
    for r in (8, 4, 2, 1):
        I("s_nop 1")
        I(f"{op}_dpp v{v}, v{v}, v{v} row_ror:{r} row_mask:0xf bank_mask:0xf")

def wave_sum_to_sgpr(v, s_tmp, vtmp):
    row_reduce("v_add_f32", v)
    I("s_nop 1")
    I(f"v_readlane_b32 s{s_tmp}, v{v}, 0")
    I(f"v_readlane_b32 s{s_tmp+1}, v{v}, 16")
    I(f"v_readlane_b32 s{s_tmp+2}, v{v}, 32")
    I(f"v_readlane_b32 s{s_tmp+3}, v{v}, 48")
    I("s_nop 1")
    I(f"v_mov_b32 v{vtmp}, s{s_tmp}")
    I(f"v_add_f32 v{vtmp}, s{s_tmp+1}, v{vtmp}")
    I(f"v_add_f32 v{vtmp}, s{s_tmp+2}, v{vtmp}")
    I(f"v_add_f32 v{vtmp}, s{s_tmp+3}, v{vtmp}")

def rbf(v, tmp=None):
    I(f"v_cvt_pk_bf16_f32 v{v}, v{v}, v{v}")
    I(f"v_and_b32 v{v}, 0xffff0000, v{v}")

def ln_stats(vx, n, vmean, vden, vt, st):
    I(f"v_add_f32 v{vt}, v{vx}, v{vx+1}")
    for i in range(2, n):
        I(f"v_add_f32 v{vt}, v{vt}, v{vx+i}")
    wave_sum_to_sgpr(vt, st, vmean)
    I(f"v_mul_f32 v{vmean}, 0x3b124925, v{vmean}")
    I(f"v_sub_f32 v{vt+1}, v{vx}, v{vmean}")
    I(f"v_mul_f32 v{vt}, v{vt+1}, v{vt+1}")
    for i in range(1, n):
        I(f"v_sub_f32 v{vt+1}, v{vx+i}, v{vmean}")
        I(f"v_fmac_f32 v{vt}, v{vt+1}, v{vt+1}")
    wave_sum_to_sgpr(vt, st, vden)
    I(f"v_mul_f32 v{vden}, 0x3b124925, v{vden}")
    rbf(vden)
    I(f"v_add_f32 v{vden}, 0x3727c5ac, v{vden}")
    rbf(vden)
    I(f"v_sqrt_f32 v{vden}, v{vden}")
    I("s_nop 0")
    rbf(vden)
    rbf(vmean)

def ln_apply(v, vmean, vden, vt):
    I(f"v_sub_f32 v{v}, v{v}, v{vmean}")
    rbf(v)
    I(f"v_rcp_f32 v{vt}, v{vden}")
    I("s_nop 0")
    I(f"v_mul_f32 v{vt+1}, v{v}, v{vt}")
    I(f"v_fma_f32 v{v}, -v{vt+1}, v{vden}, v{v}")
    I(f"v_fma_f32 v{v}, v{v}, v{vt}, v{vt+1}")
    rbf(v)

kd = []
def kernel_end(name, vgpr, sgpr=102):
    I("s_endpgm")
    kd.append((name, vgpr, sgpr))


KN = NAME + "_kernel"
SPIN = 200000
def poll(label, off, target):
    I("s_mov_b32 s47, 0")
    E(f"{label}:")
    I(f"v_mov_b32 v250, {off}")
    I("buffer_load_dword v251, v250, s[32:35], 0 offen sc0 sc1")
    I("s_waitcnt vmcnt(0)")
    I("v_readfirstlane_b32 s46, v251")
    I(f"s_cmp_ge_u32 s46, {target}")
    I(f"s_cbranch_scc1 {label}_ok")
    I("s_add_u32 s47, s47, 1")
    I(f"s_cmp_lt_u32 s47, {SPIN}")
    I("s_sleep 1")
    I(f"s_cbranch_scc1 {label}")
    E(f"{label}_ok:")
def signal(off_sgpr_or_imm):
    I("v_cmp_eq_u32 vcc, 0, v1")
    I("s_and_saveexec_b64 s[36:37], vcc")
    I(f"v_mov_b32 v250, {off_sgpr_or_imm}")
    I("v_mov_b32 v251, 1")
    I("buffer_atomic_add v251, v250, s[32:35], 0 offen sc1")
    I("s_mov_b64 exec, s[36:37]")

kernel_begin(KN)
I("s_cmp_ge_u32 s2, 256")
I("s_cbranch_scc1 L_END")
I("s_load_dwordx4 s[4:7], s[0:1], 8")
I("s_load_dwordx2 s[8:9], s[0:1], 96")
I("s_load_dwordx2 s[48:49], s[0:1], 88")
I("s_load_dwordx2 s[50:51], s[0:1], 0")
I("s_load_dwordx4 s[52:55], s[0:1], 24")
I("s_load_dwordx4 s[56:59], s[0:1], 48")
I("s_load_dwordx4 s[60:63], s[0:1], 64")
I("s_load_dwordx2 s[64:65], s[0:1], 80")
I("v_and_b32 v1, 63, v0")
I("v_lshrrev_b32 v2, 6, v0")
I("s_nop 0")
I("v_readfirstlane_b32 s3, v2")
I("s_lshr_b32 s10, s2, 5")
I("s_and_b32 s11, s2, 31")
I("s_waitcnt lgkmcnt(0)")
srd(28, 8, WS_SIZE)
srd(32, 48, 256)
I("s_cmp_ge_u32 s3, 4")
I("s_cbranch_scc1 L_HELP")
I("s_lshl_b32 s12, s10, 24")
I("s_lshl_b32 s13, s11, 16")
I("s_add_u32 s12, s12, s13")
I(f"s_add_u32 s12, s12, {28672*512}")
I("s_add_u32 s4, s4, s12")
I("s_addc_u32 s5, s5, 0")
I("s_add_u32 s6, s6, s12")
I("s_addc_u32 s7, s7, 0")
srd(20, 4, 65536)
srd(24, 6, 65536)
I("v_and_b32 v3, 15, v1")
I("v_lshrrev_b32 v4, 4, v1")
I("s_lshl_b32 s14, s3, 5")
I("v_add_u32 v7, s14, v3")
I("v_lshlrev_b32 v7, 9, v7")
I("v_lshl_add_u32 v7, v4, 4, v7")
I("s_mov_b32 s15, 8192")
for b in range(2):
    for st in range(8):
        r = 16 + (b*8+st)*4
        so = "s15" if b else "0"
        I(f"buffer_load_dwordx4 v[{r}:{r+3}], v7, s[20:23], {so} offen offset:{st*64}")
I("v_lshrrev_b32 v8, 5, v1")
I("v_add_u32 v9, s14, v8")
I("v_lshlrev_b32 v9, 9, v9")
I("v_and_b32 v10, 31, v1")
I("v_lshl_add_u32 v9, v10, 4, v9")
I("s_mov_b32 s16, 4096")
I("s_mov_b32 s17, 12288")
for i in range(16):
    r = 80 + i*4
    so = ["0", "s16", "s15", "s17"][i >> 2]
    I(f"buffer_load_dwordx4 v[{r}:{r+3}], v9, s[24:27], {so} offen offset:{(i&3)*1024}")
I("s_lshl_b32 s45, s10, 2")
I("s_cmp_lg_u32 s3, 0")
I("s_cbranch_scc1 L_PQ_ok")
I("s_mov_b64 s[66:67], exec")
I("s_mov_b64 exec, 1")
I("s_mov_b32 s47, 0")
E("L_PQ:")
I("v_mov_b32 v250, s45")
I("buffer_load_dword v251, v250, s[32:35], 0 offen sc0 sc1")
I("s_waitcnt vmcnt(0)")
I("v_readfirstlane_b32 s46, v251")
I("s_cmp_ge_u32 s46, 32")
I("s_cbranch_scc1 L_PQ_x")
I("s_add_u32 s47, s47, 1")
I(f"s_cmp_lt_u32 s47, {SPIN}")
I("s_sleep 4")
I("s_cbranch_scc1 L_PQ")
E("L_PQ_x:")
I("s_mov_b64 exec, s[66:67]")
E("L_PQ_ok:")
I("s_barrier")
I("v_lshlrev_b32 v5, 9, v3")
I("v_lshl_add_u32 v5, v4, 4, v5")
I("s_lshl_b32 s14, s10, 10")
I("v_add_u32 v5, s14, v5")
I("v_cmp_gt_u32 vcc, 2, v3")
I("v_mov_b32 v6, 0x7ffffff0")
I("s_nop 1")
I("v_cndmask_b32 v5, v6, v5, vcc")
for st in range(8):
    I(f"buffer_load_dwordx4 v[{160+4*st}:{163+4*st}], v5, s[28:31], 0 offen offset:{WS_Q+st*64} sc0 sc1")
I("s_waitcnt vmcnt(0)")
for b in range(2):
    for st in range(8):
        r = 16 + (b*8+st)*4
        c = "0" if st == 0 else f"v[{192+4*b}:{195+4*b}]"
        I(f"v_mfma_f32_16x16x32_bf16 v[{192+4*b}:{195+4*b}], v[{160+4*st}:{163+4*st}], v[{r}:{r+3}], {c}")
srd(40, 54, 4096*448*2)
I("s_lshl_b32 s18, s2, 4")
I("s_lshl_b32 s19, s3, 2")
I("s_add_u32 s18, s18, s19")
I("s_mul_i32 s18, s18, 896")
I("v_lshlrev_b32 v11, 4, v1")
I("v_add_u32 v11, s18, v11")
I("v_cmp_gt_u32 vcc, 56, v1")
I("s_nop 1")
I("v_cndmask_b32 v11, v6, v11, vcc")
I("s_nop 7")
I("v_cvt_pk_bf16_f32 v204, v192, v193")
I("v_cvt_pk_bf16_f32 v205, v196, v197")
I("v_lshlrev_b32 v200, 16, v204")
I("v_and_b32 v201, 0xffff0000, v204")
I("v_lshlrev_b32 v202, 16, v205")
I("v_and_b32 v203, 0xffff0000, v205")
for k in range(4):
    I(f"v_mul_f32 v{200+k}, 0x3d800000, v{200+k}")
I("v_max_f32 v204, v200, v202")
I("v_max_f32 v205, v201, v203")
row_reduce("v_max_f32", 204)
row_reduce("v_max_f32", 205)
I("s_lshl_b32 s18, s3, 3")
I("v_mov_b32 v206, s18")
I("v_cmp_eq_u32 vcc, 0, v1")
I("s_and_saveexec_b64 s[36:37], vcc")
I("ds_write_b64 v206, v[204:205]")
I("s_mov_b64 exec, s[36:37]")
I("s_waitcnt lgkmcnt(0)")
I("s_barrier")
I("v_mov_b32 v207, 0")
I("ds_read_b128 v[208:211], v207")
I("ds_read_b128 v[212:215], v207 offset:16")
I("s_waitcnt lgkmcnt(0)")
I("v_max_f32 v208, v208, v210")
I("v_max_f32 v209, v209, v211")
I("v_max_f32 v212, v212, v214")
I("v_max_f32 v213, v213, v215")
I("v_max_f32 v208, v208, v212")
I("v_max_f32 v209, v209, v213")
I("s_mov_b32 s19, 0x3fb8aa3b")
for k in range(4):
    I(f"v_sub_f32 v{200+k}, v{200+k}, v{208+(k&1)}")
    I(f"v_mul_f32 v{200+k}, s19, v{200+k}")
for k in range(4):
    I(f"v_exp_f32 v{200+k}, v{200+k}")
I("s_nop 0")
I("v_add_f32 v204, v200, v202")
I("v_add_f32 v205, v201, v203")
row_reduce("v_add_f32", 204)
row_reduce("v_add_f32", 205)
I("s_lshl_b32 s18, s3, 8")
I("v_lshlrev_b32 v207, 3, v1")
I("v_add_u32 v207, s18, v207")
I("v_cmp_gt_u32 vcc, 16, v1")
I("s_and_saveexec_b64 s[36:37], vcc")
I("ds_write_b64 v207, v[200:201] offset:256")
I("ds_write_b64 v207, v[202:203] offset:384")
I("s_mov_b64 exec, s[36:37]")
I("v_cmp_eq_u32 vcc, 0, v1")
I("s_and_saveexec_b64 s[36:37], vcc")
I("ds_write_b64 v206, v[204:205] offset:32")
I("s_mov_b64 exec, s[36:37]")
I("s_waitcnt lgkmcnt(0)")
I("v_lshlrev_b32 v207, 3, v8")
I("v_add_u32 v207, s18, v207")
for i in range(16):
    I(f"ds_read_b64 v[{160+2*i}:{161+2*i}], v207 offset:{256+i*16}")
for c in range(16):
    I(f"v_mov_b32 v{144+c}, 0")
for i in range(16):
    I(f"s_waitcnt lgkmcnt({15-i})")
    r = 80 + i*4
    for c in range(4):
        I(f"v_lshlrev_b32 v10, 16, v{r+c}")
        I(f"v_and_b32 v12, 0xffff0000, v{r+c}")
        I(f"v_fmac_f32 v{144+2*c}, v{160+2*i}, v10")
        I(f"v_fmac_f32 v{144+2*c+1}, v{160+2*i}, v12")
        I(f"v_fmac_f32 v{152+2*c}, v{161+2*i}, v10")
        I(f"v_fmac_f32 v{152+2*c+1}, v{161+2*i}, v12")
for i in range(4):
    I(f"buffer_load_dwordx4 v[{232+4*i}:{235+4*i}], v11, s[40:43], 0 offen offset:{i*896}")
I("s_lshl_b32 s18, s3, 1")
I("v_add_u32 v10, s18, v8")
I("v_lshlrev_b32 v10, 11, v10")
I("v_and_b32 v12, 31, v1")
I("v_lshl_add_u32 v10, v12, 5, v10")
I("ds_write_b128 v10, v[144:147] offset:4096")
I("ds_write_b128 v10, v[148:151] offset:4112")
I("ds_write_b128 v10, v[152:155] offset:5120")
I("ds_write_b128 v10, v[156:159] offset:5136")
I("s_waitcnt lgkmcnt(0)")
I("s_barrier")
I("v_lshlrev_b32 v10, 3, v0")
for p in range(8):
    I(f"ds_read_b64 v[{16+2*p}:{17+2*p}], v10 offset:{4096+p*2048}")
I("v_mov_b32 v207, 0")
I("ds_read_b128 v[40:43], v207 offset:32")
I("ds_read_b128 v[44:47], v207 offset:48")
I("s_waitcnt lgkmcnt(0)")
for p in range(1, 8):
    I(f"v_add_f32 v16, v16, v{16+2*p}")
    I(f"v_add_f32 v17, v17, v{17+2*p}")
I("s_lshl_b32 s18, s2, 11")
I("v_add_u32 v10, s18, v10")
I(f"s_mov_b32 s19, {WS_OP}")
I("buffer_store_dwordx2 v[16:17], v10, s[28:31], s19 offen sc0 sc1")
I("v_add_f32 v40, v40, v42")
I("v_add_f32 v41, v41, v43")
I("v_add_f32 v44, v44, v46")
I("v_add_f32 v45, v45, v47")
I("v_add_f32 v49, v40, v44")
I("v_add_f32 v51, v41, v45")
I("v_mov_b32 v48, v208")
I("v_mov_b32 v50, v209")
I("v_cmp_eq_u32 vcc, 0, v0")
I("s_and_saveexec_b64 s[36:37], vcc")
I("s_lshl_b32 s18, s2, 4")
I("v_mov_b32 v10, s18")
I(f"s_mov_b32 s19, {WS_ML}")
I("buffer_store_dwordx4 v[48:51], v10, s[28:31], s19 offen sc0 sc1")
I("s_mov_b64 exec, s[36:37]")
I("s_waitcnt vmcnt(0)")
I("s_barrier")
I("s_lshl_b32 s45, s10, 2")
I("s_add_u32 s45, s45, 64")
I("s_cmp_lg_u32 s3, 0")
I("s_cbranch_scc1 L_NOSIG1")
signal("s45")
E("L_NOSIG1:")
I("s_cmp_lg_u32 s3, 0")
I("s_cbranch_scc1 L_PA_ok")
I("s_mov_b64 s[66:67], exec")
I("s_mov_b64 exec, 1")
I("s_mov_b32 s47, 0")
E("L_PA:")
I("v_mov_b32 v250, s45")
I("buffer_load_dword v251, v250, s[32:35], 0 offen sc0 sc1")
I("s_waitcnt vmcnt(0)")
I("v_readfirstlane_b32 s46, v251")
I("s_cmp_ge_u32 s46, 32")
I("s_cbranch_scc1 L_PA_x")
I("s_add_u32 s47, s47, 1")
I(f"s_cmp_lt_u32 s47, {SPIN}")
I("s_sleep 4")
I("s_cbranch_scc1 L_PA")
E("L_PA_x:")
I("s_mov_b64 exec, s[66:67]")
E("L_PA_ok:")
I("s_barrier")
I("s_lshr_b32 s13, s11, 4")
I("v_and_b32 v4, 31, v1")
I("s_lshl_b32 s14, s10, 9")
I("s_lshl_b32 s15, s13, 3")
I("s_add_u32 s14, s14, s15")
I(f"s_add_u32 s14, s14, {WS_ML}")
I("v_lshlrev_b32 v5, 4, v4")
I("buffer_load_dwordx2 v[10:11], v5, s[28:31], s14 offen sc0 sc1")
I("s_lshl_b32 s14, s10, 16")
I("s_lshl_b32 s15, s13, 10")
I("s_add_u32 s14, s14, s15")
I("s_and_b32 s15, s11, 15")
I("s_lshl_b32 s15, s15, 6")
I("s_add_u32 s14, s14, s15")
I(f"s_add_u32 s14, s14, {WS_OP}")
I("v_lshlrev_b32 v5, 2, v3")
for s in range(32):
    I(f"s_add_u32 s15, s14, {s*2048}")
    I(f"buffer_load_dword v{100+s}, v5, s[28:31], s15 offen sc0 sc1")
I("s_waitcnt vmcnt(32)")
I("v_mov_b32 v12, v10")
row_reduce("v_max_f32", 12)
I("s_nop 1")
I("v_readlane_b32 s40, v12, 0")
I("v_readlane_b32 s41, v12, 16")
I("s_nop 1")
I("v_mov_b32 v12, s40")
I("v_max_f32 v12, s41, v12")
I("v_sub_f32 v10, v10, v12")
I("v_mul_f32 v10, 0x3fb8aa3b, v10")
I("v_exp_f32 v10, v10")
I("s_nop 0")
I("v_mul_f32 v11, v10, v11")
row_reduce("v_add_f32", 11)
I("s_nop 1")
I("v_readlane_b32 s40, v11, 0")
I("v_readlane_b32 s41, v11, 16")
I("s_nop 1")
I("v_mov_b32 v11, s40")
I("v_add_f32 v11, s41, v11")
I("v_rcp_f32 v13, v11")
I("s_nop 0")
I("v_mul_f32 v10, v10, v13")
I("s_lshl_b32 s18, s3, 9")
I("s_add_u32 s18, s18, 20480")
I("v_lshlrev_b32 v14, 2, v4")
I("v_add_u32 v14, s18, v14")
I("v_cmp_gt_u32 vcc, 32, v1")
I("s_and_saveexec_b64 s[36:37], vcc")
I("ds_write_b32 v14, v10")
I("s_mov_b64 exec, s[36:37]")
I("s_waitcnt lgkmcnt(0)")
I("v_mov_b32 v15, s18")
for g in range(8):
    I(f"ds_read_b128 v[{16+4*g}:{19+4*g}], v15 offset:{g*16}")
I("s_waitcnt vmcnt(0) lgkmcnt(0)")
I("v_mul_f32 v48, v16, v100")
for s in range(1, 32):
    I(f"v_fmac_f32 v48, v{16+s}, v{100+s}")
rbf(48)
I("v_cmp_gt_u32 vcc, 16, v1")
I("s_and_saveexec_b64 s[36:37], vcc")
I("ds_write_b32 v14, v48 offset:128")
I("s_mov_b64 exec, s[36:37]")
I("s_waitcnt lgkmcnt(0)")
I("s_lshl_b32 s19, s3, 4")
I("s_add_u32 s19, s19, s18")
I("v_mov_b32 v15, s19")
I("ds_read_b128 v[16:19], v15 offset:128")
I("s_waitcnt lgkmcnt(0)")
for c in range(8):
    I(f"v_mov_b32 v{32+c}, 0")
for i in range(4):
    for c in range(4):
        I(f"v_lshlrev_b32 v50, 16, v{232+4*i+c}")
        I(f"v_and_b32 v51, 0xffff0000, v{232+4*i+c}")
        I(f"v_fmac_f32 v{32+2*c}, v{16+i}, v50")
        I(f"v_fmac_f32 v{32+2*c+1}, v{16+i}, v51")
I("s_mul_i32 s18, s3, 1792")
I("v_lshlrev_b32 v14, 5, v1")
I("v_add_u32 v14, s18, v14")
I("v_cmp_gt_u32 vcc, 56, v1")
I("s_and_saveexec_b64 s[36:37], vcc")
I("ds_write_b128 v14, v[32:35] offset:4096")
I("ds_write_b128 v14, v[36:39] offset:4112")
I("s_mov_b64 exec, s[36:37]")
I("s_waitcnt lgkmcnt(0)")
I("s_barrier")
I("v_cmp_gt_u32 vcc, 224, v0")
I("s_and_saveexec_b64 s[36:37], vcc")
I("v_lshlrev_b32 v14, 3, v0")
for p in range(4):
    I(f"ds_read_b64 v[{16+2*p}:{17+2*p}], v14 offset:{4096+p*1792}")
I("s_waitcnt lgkmcnt(0)")
for p in range(1, 4):
    I(f"v_add_f32 v16, v16, v{16+2*p}")
    I(f"v_add_f32 v17, v17, v{17+2*p}")
I("s_mul_i32 s18, s2, 1792")
I(f"s_add_u32 s18, s18, {WS_P3}")
I("buffer_store_dwordx2 v[16:17], v14, s[28:31], s18 offen sc0 sc1")
I("s_mov_b64 exec, s[36:37]")
I("s_waitcnt vmcnt(0)")
I("s_barrier")
I("s_cmp_lg_u32 s3, 0")
I("s_cbranch_scc1 L_NOSIG2")
signal("128")
E("L_NOSIG2:")
I("s_cmp_ge_u32 s2, 7")
I("s_cbranch_scc1 L_END")
I("s_cmp_lg_u32 s3, 0")
I("s_cbranch_scc1 L_PF_ok")
I("s_mov_b64 s[66:67], exec")
I("s_mov_b64 exec, 1")
I("s_mov_b32 s47, 0")
E("L_PF:")
I("v_mov_b32 v250, 128")
I("buffer_load_dword v251, v250, s[32:35], 0 offen sc0 sc1")
I("s_waitcnt vmcnt(0)")
I("v_readfirstlane_b32 s46, v251")
I("s_cmp_ge_u32 s46, 704")
I("s_cbranch_scc1 L_PF_x")
I("s_add_u32 s47, s47, 1")
I(f"s_cmp_lt_u32 s47, {SPIN}")
I("s_sleep 4")
I("s_cbranch_scc1 L_PF")
E("L_PF_x:")
I("s_mov_b64 exec, s[66:67]")
E("L_PF_ok:")
I("s_barrier")

srd(20, 50, 896)
srd(24, 64, 896)
I("s_lshl_b32 s10, s2, 6")
I("v_add_u32 v3, s10, v1")
I("v_lshlrev_b32 v4, 2, v3")
I("v_mul_u32_u24 v5, 114688, v2")
I("v_add_u32 v5, v5, v4")
for p in range(64):
    I(f"s_mov_b32 s11, {WS_P3 + p*1792}")
    I(f"buffer_load_dword v{16+p}, v5, s[28:31], s11 offen sc0 sc1")
    if p == 40:
        I("s_waitcnt vmcnt(20)")
I("v_lshlrev_b32 v6, 1, v3")
I("buffer_load_ushort v8, v6, s[20:23], 0 offen")
I(f"s_mov_b32 s11, {WS_Y}")
I("buffer_load_dword v9, v4, s[28:31], s11 offen sc0 sc1")
I("s_waitcnt vmcnt(0)")
for p in range(1, 64):
    I(f"v_add_f32 v16, v16, v{16+p}")
I("v_lshlrev_b32 v7, 2, v0")
I("ds_write_b32 v7, v16 offset:16384")
I("s_waitcnt lgkmcnt(0)")
I("s_barrier")
I("v_cmp_gt_u32 vcc, 64, v0")
I("s_and_saveexec_b64 s[36:37], vcc")
for p in range(4):
    I(f"ds_read_b32 v{90+p}, v7 offset:{16384+p*256}")
I("s_waitcnt lgkmcnt(0)")
I("v_add_f32 v90, v90, v91")
I("v_add_f32 v92, v92, v93")
I("v_add_f32 v90, v90, v92")
rbf(90)
I("v_lshlrev_b32 v8, 16, v8")
I("v_add_f32 v90, v8, v90")
rbf(90)
I("v_add_f32 v90, v90, v9")
I("v_cvt_pk_bf16_f32 v90, v90, v90")
I("buffer_store_short v90, v6, s[24:27], 0 offen")
I("s_mov_b64 exec, s[36:37]")
I("s_branch L_END")
E("L_HELP:")
srd(20, 50, 896)
I("v_lshlrev_b32 v3, 1, v1")
for i in range(7):
    I(f"buffer_load_ushort v{10+i}, v3, s[20:23], 0 offen offset:{i*128}")
I("s_cmp_eq_u32 s3, 4")
I("s_cbranch_scc0 L_MLP")
srd(24, 52, 448*4096*2)
I("v_lshrrev_b32 v4, 1, v1")
I("v_lshlrev_b32 v5, 1, v4")
for i in range(14):
    I(f"buffer_load_ushort v{20+i}, v5, s[20:23], 0 offen offset:{i*64}")
I("v_and_b32 v6, 1, v1")
I("v_lshlrev_b32 v6, 4, v6")
I("v_lshl_add_u32 v6, v4, 13, v6")
I("s_lshl_b32 s18, s2, 5")
I("v_add_u32 v6, s18, v6")
for i in range(14):
    I(f"s_mov_b32 s19, {i*32*8192}")
    I(f"buffer_load_dwordx4 v[{36+4*i}:{39+4*i}], v6, s[24:27], s19 offen")
I("s_waitcnt vmcnt(28)")
for i in range(7):
    I(f"v_lshlrev_b32 v{10+i}, 16, v{10+i}")
ln_stats(10, 7, 7, 8, 100, 40)
I("s_waitcnt vmcnt(14)")
for i in range(14):
    I(f"v_lshlrev_b32 v{20+i}, 16, v{20+i}")
    ln_apply(20+i, 7, 8, 100)
for c in range(8):
    I(f"v_mov_b32 v{104+c}, 0")
for i in range(14):
    I(f"s_waitcnt vmcnt({13-i})")
    for c in range(4):
        I(f"v_lshlrev_b32 v100, 16, v{36+4*i+c}")
        I(f"v_and_b32 v101, 0xffff0000, v{36+4*i+c}")
        I(f"v_fmac_f32 v{104+2*c}, v{20+i}, v100")
        I(f"v_fmac_f32 v{104+2*c+1}, v{20+i}, v101")
for c in range(8):
    for r in (2, 4, 8):
        I("s_nop 1")
        I(f"v_add_f32_dpp v{104+c}, v{104+c}, v{104+c} row_ror:{r} row_mask:0xf bank_mask:0xf")
I("v_lshrrev_b32 v9, 4, v1")
I("v_lshlrev_b32 v9, 6, v9")
I("v_and_b32 v100, 1, v1")
I("v_lshl_add_u32 v9, v100, 5, v9")
I("v_and_b32 v100, 15, v1")
I("v_cmp_gt_u32 vcc, 2, v100")
I("s_and_saveexec_b64 s[36:37], vcc")
I("ds_write_b128 v9, v[104:107] offset:22528")
I("ds_write_b128 v9, v[108:111] offset:22544")
I("s_mov_b64 exec, s[36:37]")
I("s_waitcnt lgkmcnt(0)")
I("v_cmp_gt_u32 vcc, 16, v1")
I("s_and_saveexec_b64 s[36:37], vcc")
I("v_lshlrev_b32 v9, 2, v1")
for p in range(4):
    I(f"ds_read_b32 v{112+p}, v9 offset:{22528+p*64}")
I("s_waitcnt lgkmcnt(0)")
I("v_add_f32 v112, v112, v113")
I("v_add_f32 v114, v114, v115")
I("v_add_f32 v112, v112, v114")
I("v_cvt_pk_bf16_f32 v112, v112, v112")
I("v_lshlrev_b32 v9, 1, v1")
I("s_lshl_b32 s18, s2, 5")
I("v_add_u32 v9, s18, v9")
I(f"buffer_store_short v112, v9, s[28:31], 0 offen offset:{WS_Q} sc0 sc1")
I("s_mov_b64 exec, s[36:37]")
I("s_waitcnt vmcnt(0)")
I("s_lshl_b32 s45, s10, 2")
signal("s45")
I("s_branch L_END")
E("L_MLP:")
I("s_mul_i32 s18, s2, 3")
I("s_add_u32 s18, s18, s3")
I("s_sub_u32 s18, s18, 5")
I("s_cmp_ge_u32 s18, 448")
I("s_cbranch_scc1 L_END")
srd(24, 56, 3584)
srd(68, 58, 3584)
srd(72, 60, 3584)
I("s_lshl_b32 s19, s18, 1")
I("v_mov_b32 v4, s19")
I("buffer_load_ushort v20, v4, s[20:23], 0 offen")
I("v_lshlrev_b32 v5, 3, v1")
for i in range(7):
    I(f"buffer_load_dwordx2 v[{32+2*i}:{33+2*i}], v5, s[24:27], 0 offen offset:{i*512}")
    I(f"buffer_load_dwordx2 v[{48+2*i}:{49+2*i}], v5, s[68:71], 0 offen offset:{i*512}")
    I(f"buffer_load_dwordx2 v[{64+2*i}:{65+2*i}], v5, s[72:75], 0 offen offset:{i*512}")
I("s_load_dword s44, s[62:63], 0")
I("s_waitcnt vmcnt(22)")
for i in range(7):
    I(f"v_lshlrev_b32 v{10+i}, 16, v{10+i}")
ln_stats(10, 7, 7, 8, 80, 40)
I("s_waitcnt vmcnt(21)")
I("v_lshlrev_b32 v20, 16, v20")
for i in range(7):
    ln_apply(10+i, 7, 8, 80)
ln_apply(20, 7, 8, 80)
ln_stats(10, 7, 7, 8, 80, 40)
ln_apply(20, 7, 8, 80)
I("v_mov_b32 v21, 0")
I("s_waitcnt vmcnt(0)")
I("s_mov_b32 s45, 0x3d372713")
I("s_mov_b32 s46, 0xc0135761")
for i in range(7):
    for c in range(4):
        reg = 32+2*i+(c>>1)
        if c & 1:
            I(f"v_and_b32 v82, 0xffff0000, v{reg}")
            I(f"v_and_b32 v83, 0xffff0000, v{reg+16}")
            I(f"v_and_b32 v84, 0xffff0000, v{reg+32}")
        else:
            I(f"v_lshlrev_b32 v82, 16, v{reg}")
            I(f"v_lshlrev_b32 v83, 16, v{reg+16}")
            I(f"v_lshlrev_b32 v84, 16, v{reg+32}")
        I("v_mul_f32 v82, v20, v82")
        rbf(82)
        I("v_add_f32 v82, v82, v83")
        rbf(82)
        I("v_mul_f32 v83, v82, v82")
        I("v_mul_f32 v83, s45, v83")
        I("v_fma_f32 v83, v83, v82, v82")
        I("v_mul_f32 v83, s46, v83")
        I("v_exp_f32 v83, v83")
        I("s_nop 0")
        I("v_add_f32 v83, 1.0, v83")
        I("v_rcp_f32 v83, v83")
        I("s_nop 0")
        I("v_mul_f32 v82, v82, v83")
        rbf(82)
        I("v_fmac_f32 v21, v82, v84")
wave_sum_to_sgpr(21, 40, 22)
rbf(22)
I("s_waitcnt lgkmcnt(0)")
I("s_lshl_b32 s44, s44, 16")
I("v_add_f32 v22, s44, v22")
rbf(22)
I("v_cmp_eq_u32 vcc, 0, v1")
I("s_and_saveexec_b64 s[36:37], vcc")
I("s_lshl_b32 s19, s18, 2")
I("v_mov_b32 v4, s19")
I(f"s_mov_b32 s19, {WS_Y}")
I("buffer_store_dword v22, v4, s[28:31], s19 offen sc0 sc1")
I("s_mov_b64 exec, s[36:37]")
I("s_waitcnt vmcnt(0)")
signal("128")
E("L_END:")
kernel_end(KN, 252)
E('.section .rodata,"a"')
for (name, vg, sg) in kd:
    E(".p2align 6")
    E(f".amdhsa_kernel {name}")
    E(f"  .amdhsa_next_free_vgpr {vg}")
    E(f"  .amdhsa_next_free_sgpr {sg}")
    E(f"  .amdhsa_accum_offset {(vg+3)//4*4}")
    E("  .amdhsa_group_segment_fixed_size 0")
    E("  .amdhsa_kernarg_size 104")
    E("  .amdhsa_user_sgpr_count 2")
    E("  .amdhsa_user_sgpr_kernarg_segment_ptr 1")
    E("  .amdhsa_system_sgpr_workgroup_id_x 1")
    E(".end_amdhsa_kernel")
open("cdna_kernels/%s.s" % NAME, "w").write("\n".join(out) + "\n")
```
